```python
import torch

def _softmax(x, axis=-1):
    return torch.softmax(x, dim=axis)
def _gelu(x):
    return torch.nn.functional.gelu(x, approximate="tanh")
def _silu(x):
    return torch.nn.functional.silu(x)
def _sigmoid(x):
    return torch.sigmoid(x)
def _layernorm(x, axis=-1, eps=1e-5):
    m = x.mean(dim=axis, keepdim=True)
    v = x.var(dim=axis, keepdim=True, unbiased=False)
    return (x - m) / torch.sqrt(v + eps)
def _scatter_add(tgt, idx, src, axis=0):
    return tgt.clone().index_add_(axis, idx, src)
def _segment_sum(src, seg, n):
    out = torch.zeros((n,) + src.shape[1:], dtype=src.dtype)
    return out.index_add_(0, seg, src)
def _pad(x, pw):
    flat = tuple(v for pair in reversed(pw) for v in pair)
    return torch.nn.functional.pad(x, flat)

kernel_name = 'sequential_preLN__sliding_local_dilated__dense_activation_relu__prompt'

def setup_inputs():

    _w = (lambda a: (lambda t: t.to(torch.bfloat16) if t.is_floating_point() else t)(torch.as_tensor(a)))
    def _A_setup():
        B, S, D = 1, 2048, 512
        return {
            "x": _w((lambda *s: torch.randn(*s, dtype=torch.bfloat16) * 0.05)(B, S, D)),
            "wqkv": _w((lambda *s: torch.randn(*s, dtype=torch.bfloat16) * 0.05)(D, 3 * D)),
            "wo": _w((lambda *s: torch.randn(*s, dtype=torch.bfloat16) * 0.05)(D, D)),
        }
    _A_in = _A_setup()

    def _B_setup():
        B, S, D, Dff = 1, 2048, 512, 1376
        return {
            "x": _w((lambda *s: torch.randn(*s, dtype=torch.bfloat16) * 0.05)(B, S, D)),
            "w1": _w((lambda *s: torch.randn(*s, dtype=torch.bfloat16) * 0.05)(D, Dff)),
            "w2": _w((lambda *s: torch.randn(*s, dtype=torch.bfloat16) * 0.05)(Dff, D)),
        }
    _B_in = _B_setup()

    return {
        "A_x": _A_in["x"],
        "A_wqkv": _A_in["wqkv"],
        "A_wo": _A_in["wo"],
        "B_x": _B_in["x"],
        "B_w1": _B_in["w1"],
        "B_w2": _B_in["w2"],
    }

def reference(A_x, A_wqkv, A_wo, B_x, B_w1, B_w2):
    def _A_ref(x, wqkv, wo):
        B, S, D = x.shape
        H = 32; Dh = D // H
        W, dil = 8, 2
        qkv = (lambda x, *d: x.permute(*d))((x @ wqkv).reshape(B, S, 3, H, Dh), 2, 0, 3, 1, 4)
        q, k, v = qkv[0], qkv[1], qkv[2]
        scale = Dh ** -0.5
        pos = torch.arange(S)
        off = torch.arange(W) * dil
        idx = pos[:, None] - off[None, :]
        mask = idx >= 0
        idx_c = torch.where(mask, idx, 0).reshape(-1)
        kg = k[:, :, idx_c, :].reshape(B, H, S, W, Dh)
        vg = v[:, :, idx_c, :].reshape(B, H, S, W, Dh)
        logits = torch.einsum("bhsd,bhswd->bhsw", q, kg) * scale
        logits = torch.where(mask[None, None, :, :], logits, -1e9)
        attn = _softmax(logits, axis=-1)
        o = torch.einsum("bhsw,bhswd->bhsd", attn, vg)
        return (lambda x, *d: x.permute(*d))(o, 0, 2, 1, 3).reshape(B, S, D) @ wo

    def _B_ref(x, w1, w2):
        h = torch.einsum("bsd,df->bsf", x, w1)
        zero = torch.zeros_like(h)
        h = torch.maximum(h, zero)
        return torch.einsum("bsf,fd->bsd", h, w2)

    x = A_x
    h = x + _A_ref(_layernorm(x, axis=-1), A_wqkv, A_wo)
    h2 = h + _B_ref(_layernorm(h, axis=-1), B_w1, B_w2)
    return h2
```

```python
import re

TRANS = ("v_exp_f32", "v_log_f32", "v_rcp_f32", "v_rsq_f32", "v_sqrt_f32", "v_sin_f32", "v_cos_f32", "v_rcp_iflag_f32")


def regs_of(op):
    op = op.strip()
    if op.startswith("-") or op.startswith("|"):
        op = op.strip("-|")
    m = re.fullmatch(r"([vas])\[(\d+):(\d+)\]", op)
    if m:
        return {(m.group(1), i) for i in range(int(m.group(2)), int(m.group(3)) + 1)}
    m = re.fullmatch(r"([vas])(\d+)", op)
    if m:
        return {(m.group(1), int(m.group(2)))}
    if op == "vcc":
        return {("s", 106), ("s", 107)}
    if op == "exec":
        return {("s", 126), ("s", 127)}
    if op == "m0":
        return {("s", 124)}
    return set()


class Ins:
    def __init__(self, text):
        self.text = text
        t = text.split(";")[0].strip()
        self.is_label = t.endswith(":")
        self.mn = t.split()[0] if t else ""
        rest = t[len(self.mn):].strip()
        ops = [o.strip() for o in rest.split(",")] if rest else []
        self.mods = ""
        if ops:
            last = ops[-1].split()
            if last:
                ops[-1] = last[0]
                self.mods = " ".join(last[1:])
        self.ops = ops
        mn = self.mn
        self.kind = "other"
        self.w = set()
        self.r = set()
        self.states = 1
        if self.is_label or not mn:
            self.kind = "label"
            self.states = 0
            return
        R = [regs_of(o) for o in ops]
        if mn == "s_nop":
            self.kind = "nop"
            self.states = int(ops[0]) + 1
            return
        if mn.startswith("v_mfma"):
            self.kind = "mfma"
            self.w = R[0]
            self.rA = R[1] | R[2]
            self.rC = R[3]
            self.r = self.rA | self.rC
            self.passes = 8 if "32x32" in mn else (2 if "4x4x4" in mn else 4)
            return
        if mn.startswith("v_"):
            self.kind = "valu"
            if mn.startswith("v_permlane") and "swap" in mn:
                self.w = R[0] | R[1]
                self.r = R[0] | R[1]
                self.perm = True
            elif mn.startswith("v_cmp"):
                self.w = R[0]
                self.r = set().union(*R[1:]) if len(R) > 1 else set()
            else:
                self.w = R[0]
                self.r = set().union(*R[1:]) if len(R) > 1 else set()
                if mn.startswith("v_cndmask") and len(ops) == 3:
                    self.r |= regs_of("vcc")
                if mn.startswith(("v_fmac", "v_dot2c", "v_mac")):
                    self.r |= R[0]
                if "_co_" in mn:
                    self.w |= R[1]
            self.trans = mn.replace("_e32", "").replace("_e64", "") in TRANS
            self.dpp = ("row_" in self.mods) or ("quad_perm" in self.mods) or ("wave_" in self.mods)
            if self.dpp:
                self.r |= R[0]
            self.dot = mn.startswith("v_dot")
            self.rdlane = mn.startswith(("v_readfirstlane", "v_readlane"))
            return
        if mn.startswith(("buffer_", "global_")):
            self.kind = "vmem"
            lds = " lds" in (" " + self.mods)
            self.lds = lds
            if "store" in mn or ("atomic" in mn):
                self.r = set().union(*R)
                self.store = True
                self.wide = R[0] if ("x4" in mn or "x3" in mn) else set()
            else:
                self.store = False
                self.wide = set()
                if lds:
                    self.r = set().union(*R) | regs_of("m0")
                else:
                    self.w = R[0]
                    self.r = set().union(*R[1:])
            return
        if mn.startswith("ds_"):
            self.kind = "ds"
            if mn.startswith(("ds_read", "ds_bpermute", "ds_permute")) or "_rtn" in mn:
                self.w = R[0]
                self.r = set().union(*R[1:])
            else:
                self.r = set().union(*R)
            return
        if mn.startswith("s_"):
            self.kind = "salu"
            if mn.startswith(("s_cmp", "s_cbranch", "s_branch", "s_waitcnt", "s_barrier", "s_endpgm", "s_sleep", "s_setprio", "s_bitcmp")):
                self.r = set().union(*R) if R else set()
            else:
                self.w = R[0] if R else set()
                self.r = set().union(*R[1:]) if len(R) > 1 else set()
                if "saveexec" in mn:
                    self.w |= regs_of("exec")
            return


def need(prod, cons):
    n = 0
    pk, ck = prod.kind, cons.kind
    if pk == "valu":
        wv = {x for x in prod.w if x[0] in "va"}
        ws = {x for x in prod.w if x[0] == "s"}
        if ck == "mfma" and wv & cons.r:
            n = max(n, 2)
        if ck == "valu":
            if wv & cons.r:
                if getattr(cons, "perm", False) or cons.dpp:
                    n = max(n, 2)
                if cons.rdlane:
                    n = max(n, 1)
                if prod.trans and not cons.trans:
                    n = max(n, 1)
                if prod.dot and prod.mn != cons.mn:
                    n = max(n, 3)
                if "op_sel" in prod.mods or "sdwa" in prod.mn:
                    n = max(n, 1)
            if prod.dot and (wv & cons.w) and prod.mn != cons.mn:
                n = max(n, 3)
            if ws & cons.r:
                n = max(n, 4 if cons.rdlane else 2)
        if ck in ("vmem",) and ws & cons.r:
            n = max(n, 5)
        if ck in ("vmem", "ds") and prod.dot and wv & cons.r:
            n = max(n, 3)
        if ck == "salu" and ws & cons.r:
            n = max(n, 1)
    elif pk == "mfma":
        big = {2: 5, 4: 8, 8: 12}[prod.passes]
        if ck == "mfma":
            if prod.w & cons.rA:
                n = max(n, big)
            if prod.w & cons.rC:
                if prod.w == cons.rC and prod.passes == cons.passes:
                    n = max(n, 2 if prod.passes == 2 else 0)
                else:
                    n = max(n, {2: 4, 4: 6, 8: 10}[prod.passes])
            elif prod.w & cons.w:
                n = max(n, big)
        elif ck in ("valu", "vmem", "ds"):
            if prod.w & (cons.r | cons.w):
                n = max(n, big)
            if ck == "valu" and (prod.rC & cons.w):
                n = max(n, {2: 1, 4: 3, 8: 7}[prod.passes])
    elif pk == "salu":
        if ck == "vmem" and getattr(cons, "lds", False) and ("s", 124) in prod.w:
            n = max(n, 1)
    elif pk == "vmem":
        if prod.store and prod.wide and (prod.wide & cons.w):
            n = max(n, 2)
    return n


class Asm:
    def __init__(self):
        self.L = []

    def __call__(self, text):
        for line in text.split("\n"):
            line = line.strip()
            if line:
                self.L.append(line)

    def finish(self):
        out = []
        hist = []
        pos = 0
        for t in self.L:
            ins = Ins(t)
            if ins.kind == "label":
                out.append(t)
                continue
            req = 0
            for (p, ppos) in hist[-24:]:
                n = need(p, ins)
                if n:
                    have = pos - ppos - 1
                    req = max(req, n - have)
            if req > 0:
                out.append(f"  s_nop {req-1}")
                pos += req
            out.append("  " + t)
            pos += ins.states
            hist.append((ins, pos - 1))
        return "\n".join(out) + "\n"


class Alloc:
    def __init__(self, start=0, limit=256):
        self.n = start
        self.limit = limit
        self.hi = start

    def __call__(self, cnt=1, align=None):
        if align is None:
            align = 2 if cnt > 1 else 1
        self.n = (self.n + align - 1) // align * align
        b = self.n
        self.n += cnt
        assert self.n <= self.limit, "out of regs"
        self.hi = max(self.hi, self.n)
        return b


def vr(b, n, k="v"):
    return f"{k}[{b}:{b+n-1}]" if n > 1 else f"{k}{b}"


def kern_hdr(name):
    return f""".globl {name}
.p2align 8
.type {name},@function
{name}:
"""


def desc(name, vgpr, agpr=0, sgpr=102):
    acc = max(4, (vgpr + 3) // 4 * 4)
    return f""".p2align 6
.amdhsa_kernel {name}
  .amdhsa_next_free_vgpr {acc+agpr if agpr else vgpr}
  .amdhsa_next_free_sgpr {sgpr}
  .amdhsa_accum_offset {acc}
  .amdhsa_group_segment_fixed_size 0
  .amdhsa_kernarg_size 72
  .amdhsa_user_sgpr_count 2
  .amdhsa_user_sgpr_kernarg_segment_ptr 1
  .amdhsa_system_sgpr_workgroup_id_x 1
.end_amdhsa_kernel
"""
```

```python
import sys
sys.path.insert(0, "work")
from asmlib import *

O_OFF, O_SZ = 0, 0x200000
H_OFF, H_SZ = 0x200000, 0x200000
HID_OFF, HID_SZ = 0x400000, 128 * 43 * 1024
ONES = "0x3f803f80"


def srd(A, b, lo, hi, size, add=0):
    if add:
        A(f"s_add_u32 s{b}, s{lo}, {add}")
        A(f"s_addc_u32 s{b+1}, s{hi}, 0")
        A(f"s_and_b32 s{b+1}, s{b+1}, 0xffff")
    else:
        A(f"s_mov_b32 s{b}, s{lo}")
        A(f"s_and_b32 s{b+1}, s{hi}, 0xffff")
    A(f"s_mov_b32 s{b+2}, {size}")
    A(f"s_mov_b32 s{b+3}, 0x20000")


def rnd_bf16(A, dst, src):
    A(f"v_cvt_pk_bf16_f32 v{dst}, v{src}, v{src}")
    A(f"v_lshlrev_b32 v{dst}, 16, v{dst}")


def ln_stats(A, vsum, vsq, vmean, vrstd, t0, t1):
    A(f"v_mul_f32 v{t0}, 0x3b000000, v{vsum}")
    A(f"v_mul_f32 v{t1}, 0x3b000000, v{vsq}")
    A(f"v_fma_f32 v{t1}, -v{t0}, v{t0}, v{t1}")
    A(f"v_max_f32 v{t1}, 0, v{t1}")
    rnd_bf16(A, vmean, t0)
    rnd_bf16(A, t1, t1)
    A(f"v_add_f32 v{t1}, 0x3727c5ac, v{t1}")
    rnd_bf16(A, t1, t1)
    A(f"v_sqrt_f32 v{t1}, v{t1}")
    rnd_bf16(A, t1, t1)
    A(f"v_rcp_f32 v{vrstd}, v{t1}")


def common_head(A, nwg):
    A(f"s_cmp_ge_u32 s2, {nwg}")
    A("s_cbranch_scc1 END")


def stageA(name):
    A = Asm()
    END = name + "_end"
    A(f"s_cmp_ge_u32 s2, 256")
    A(f"s_cbranch_scc1 {END}")
    A("s_load_dwordx4 s[4:7], s[0:1], 0")
    A("s_load_dwordx2 s[20:21], s[0:1], 64")
    V = Alloc(1)
    vL, vM, vG, vT0, vT1, vT2, vT3 = [V() for _ in range(7)]
    A(f"v_lshrrev_b32 v{vT0}, 6, v0")
    A(f"v_and_b32 v{vL}, 63, v0")
    A(f"v_readfirstlane_b32 s3, v{vT0}")
    A(f"v_and_b32 v{vM}, 15, v{vL}")
    A(f"v_lshrrev_b32 v{vG}, 4, v{vL}")
    A("s_and_b32 s22, s2, 7")
    A("s_lshr_b32 s23, s2, 3")
    A("s_lshr_b32 s24, s23, 3")
    A("s_lshl_b32 s22, s22, 2")
    A("s_add_u32 s22, s22, s24")
    A("s_and_b32 s23, s23, 7")
    SLOT0, SLOTSZ = 16384, 32768
    STATS, DUMMY = 147456, 148480
    vXd0, vXd1, vWd0, vWd1 = [V() for _ in range(4)]
    A(f"v_lshrrev_b32 v{vT0}, 3, v{vL}")
    A(f"v_and_b32 v{vT1}, 7, v{vL}")
    A(f"v_lshrrev_b32 v{vT2}, 1, v{vT0}")
    A(f"v_xor_b32 v{vT2}, v{vT1}, v{vT2}")
    A(f"v_lshlrev_b32 v{vT2}, 4, v{vT2}")
    A(f"v_lshl_add_u32 v{vXd0}, v{vT0}, 11, v{vT2}")
    A(f"v_xor_b32 v{vXd1}, 64, v{vXd0}")
    A(f"v_and_b32 v{vT2}, 2, v{vT0}")
    A(f"v_xor_b32 v{vT2}, v{vT1}, v{vT2}")
    A(f"v_lshlrev_b32 v{vT2}, 4, v{vT2}")
    A(f"v_mul_u32_u24 v{vT3}, 3072, v{vT0}")
    A(f"v_add_u32 v{vWd0}, v{vT3}, v{vT2}")
    A(f"v_xor_b32 v{vWd1}, 64, v{vWd0}")
    vHd = [V() for _ in range(4)]
    A(f"v_lshlrev_b32 v{vT0}, 4, v{vL}")
    A("s_lshl_b32 s25, s3, 6")
    for j in range(4):
        A(f"s_add_u32 s26, s25, {16*j}")
        A(f"v_xor_b32 v{vHd[j]}, s26, v{vT0}")
    A("s_lshl_b32 s27, s22, 16")
    A("s_lshr_b32 s28, s3, 1")
    A("s_lshl_b32 s28, s28, 15")
    A("s_and_b32 s29, s3, 1")
    A("s_lshl_b32 s29, s29, 10")
    A("s_add_u32 s30, s27, s28")
    A("s_add_u32 s30, s30, s29")
    A("s_add_u32 s31, s30, 16384")
    A("s_mul_i32 s32, s3, 49152")
    A("s_lshl_b32 s33, s23, 7")
    A("s_add_u32 s32, s32, s33")
    A("s_lshl_b32 s34, s3, 11")
    A("s_lshl_b32 s35, s3, 13")
    A("s_add_u32 s35, s35, s27")
    A("s_cmp_lt_u32 s3, 2")
    A("s_cselect_b32 s36, 16, 31")
    A("s_lshl_b32 s36, s36, 10")
    A("s_sub_u32 s35, s35, s36")
    A("s_lshl_b32 s37, s3, 12")
    A("s_waitcnt lgkmcnt(0)")
    srd(A, 8, 4, 5, 0x200000)
    srd(A, 12, 6, 7, 0x180000)
    srd(A, 16, 20, 21, O_SZ, O_OFF)
    vOnes = V(4, 4)
    for i in range(4):
        A(f"v_mov_b32 v{vOnes+i}, {ONES}")
    A(f"v_lshlrev_b32 v{vT0}, 4, v{vL}")
    A(f"ds_write_b128 v{vT0}, {vr(vOnes,4)}")
    A("s_cmp_eq_u32 s3, 0")
    A(f"s_cselect_b32 s38, {DUMMY}, s37")
    for j in range(4):
        if j == 0:
            A("s_mov_b32 m0, s38")
        else:
            A(f"s_add_u32 m0, s37, {1024*j}")
        A(f"s_add_u32 s39, s35, {2048*j}")
        A(f"buffer_load_dwordx4 v{vHd[j]}, s[8:11], s39 offen lds")

    def dma_chunk(c):
        sb = SLOT0 + (c & 3) * SLOTSZ
        for e in range(2):
            A(f"s_add_u32 s39, s32, {c*196608 + e*24576}")
            for sg in range(3):
                A(f"s_add_u32 m0, s34, {sb + 8192 + sg*8192 + e*1024 - sg*1024}")
                off = f" offset:{sg*1024}" if sg else ""
                A(f"buffer_load_dwordx4 v{vWd1 if e else vWd0}, s[12:15], s39 offen{off} lds")
        for e in range(2):
            A(f"s_add_u32 m0, s34, {sb + e*1024 - c*128}")
            off = f" offset:{c*128}" if c else ""
            A(f"buffer_load_dwordx4 v{vXd1 if e else vXd0}, s[8:11], s{31 if e else 30} offen{off} lds")

    for c in range(4):
        dma_chunk(c)
    vXr = [[V(), V()], [V(), V()]]
    vXs = [[V(), V()], [V(), V()]]
    vWr = [V(), V()]
    vHr = [V() for _ in range(4)]
    A(f"v_lshrrev_b32 v{vT0}, 1, v{vM}")
    A(f"v_xor_b32 v{vT0}, v{vG}, v{vT0}")
    A(f"v_lshlrev_b32 v{vT0}, 4, v{vT0}")
    A(f"v_lshl_add_u32 v{vT0}, v{vM}, 7, v{vT0}")
    A(f"v_add_u32 v{vXr[0][0]}, {SLOT0}, v{vT0}")
    A(f"v_xor_b32 v{vXr[0][1]}, 64, v{vXr[0][0]}")
    A(f"v_add_u32 v{vXr[1][0]}, 65536, v{vXr[0][0]}")
    A(f"v_add_u32 v{vXr[1][1]}, 65536, v{vXr[0][1]}")
    for a in range(2):
        for b in range(2):
            A(f"v_add_u32 v{vXs[a][b]}, s34, v{vXr[a][b]}")
    A(f"v_bfe_u32 v{vT0}, v{vL}, 2, 2")
    A(f"v_and_b32 v{vT1}, 3, v{vL}")
    A(f"v_lshrrev_b32 v{vT2}, 1, v{vT0}")
    A(f"v_and_b32 v{vT3}, 1, v{vG}")
    A(f"v_lshl_add_u32 v{vT2}, v{vT3}, 1, v{vT2}")
    A(f"v_xor_b32 v{vT2}, s3, v{vT2}")
    A(f"v_lshlrev_b32 v{vT2}, 5, v{vT2}")
    A(f"v_lshl_add_u32 v{vT2}, v{vT1}, 3, v{vT2}")
    A(f"v_lshl_add_u32 v{vT0}, v{vG}, 3, v{vT0}")
    A(f"v_lshl_add_u32 v{vT2}, v{vT0}, 7, v{vT2}")
    A(f"v_add_u32 v{vWr[0]}, {SLOT0+8192}, v{vT2}")
    A(f"v_add_u32 v{vWr[1]}, 65536, v{vWr[0]}")
    A(f"v_xor_b32 v{vT0}, v{vG}, v{vM}")
    A(f"v_lshlrev_b32 v{vT0}, 4, v{vT0}")
    A(f"v_lshl_add_u32 v{vHr[0]}, v{vM}, 10, v{vT0}")
    for t in range(1, 4):
        A(f"v_xor_b32 v{vHr[t]}, {64*t}, v{vHr[0]}")
    Dq = [V(4, 4) for _ in range(5)]
    Dk = [V(4, 4) for _ in range(5)]
    Dv = [V(4, 4) for _ in range(5)]
    Ssum, Ssq, Hsum, Hsq = [V(4, 4) for _ in range(4)]
    for b in Dq + Dk + Dv + [Ssum, Ssq, Hsum, Hsq]:
        for i in range(4):
            A(f"v_mov_b32 v{b+i}, 0")
    vD = V()
    mark = V.n
    buf = []
    for _ in range(2):
        buf.append(dict(X=[V(4, 4) for _ in range(5)], XS=V(4, 4), W=[V(4, 4) for _ in range(3)]))

    def reads(c, pp, B):
        s = c & 3
        sp, so = s >> 1, (s & 1) * SLOTSZ
        P = 2 * c + pp
        for sg in range(3):
            for hh in range(2):
                A(f"ds_read_b64_tr_b16 {vr(B['W'][sg]+2*hh,2)}, v{vWr[sp]} offset:{so + sg*8192 + pp*4096 + hh*512}")
        A(f"ds_read_b128 {vr(B['X'][0],4)}, v{vHr[P&3]} offset:{(P>>2)*256}")
        for q in range(4):
            A(f"ds_read_b128 {vr(B['X'][1+q],4)}, v{vXr[sp][pp]} offset:{so + q*2048}")
        A(f"ds_read_b128 {vr(B['XS'],4)}, v{vXs[sp][pp]} offset:{so}")

    def mf(D, a, b):
        A(f"v_mfma_f32_16x16x32_bf16 {vr(D,4)}, {vr(a,4)}, {vr(b,4)}, {vr(D,4)}")

    def mfmas(B):
        for f in range(5):
            mf(Dq[f], B['W'][0], B['X'][f])
            mf(Dk[f], B['W'][1], B['X'][f])
            mf(Dv[f], B['X'][f], B['W'][2])
        mf(Hsum, vOnes, B['X'][0])
        mf(Hsq, B['X'][0], B['X'][0])
        mf(Ssum, vOnes, B['XS'])
        mf(Ssq, B['XS'], B['XS'])

    A(f"v_lshlrev_b32 v{vT0}, 2, v{vG}")
    A(f"v_sub_u32 v{vD}, v{vT0}, v{vM}")
    MS, MP9, MPE, MPO = 40, 48, 56, 64
    for r_ in range(4):
        A(f"v_add_u32 v{vT1}, {r_+7}, v{vD}")
        A(f"v_cmp_gt_u32 s[{MS+2*r_}:{MS+2*r_+1}], 8, v{vT1}")
        A(f"v_cmp_le_i32 s[{MP9+2*r_}:{MP9+2*r_+1}], {9-r_}, v{vD}")
        A(f"v_cmp_le_i32 s[{MPE+2*r_}:{MPE+2*r_+1}], {1-r_}, v{vD}")
    A(f"v_cmp_gt_u32 s[72:73], 2, v{vG}")
    A("s_cmp_eq_u32 s22, 0")
    A("s_cselect_b32 s74, 0, -1")
    A("s_mov_b32 s75, s74")
    A("s_and_b64 s[72:73], s[72:73], s[74:75]")
    for r_ in range(4):
        A(f"s_and_b64 s[{MPE+2*r_}:{MPE+2*r_+1}], s[{MPE+2*r_}:{MPE+2*r_+1}], s[72:73]")
        A(f"s_and_b64 s[{MPO+2*r_}:{MPO+2*r_+1}], s[{MP9+2*r_}:{MP9+2*r_+1}], s[74:75]")
    M1, M2, M3, MD = 76, 78, 80, 82
    A(f"v_and_b32 v{vT0}, 3, v{vM}")
    A(f"v_cmp_eq_u32 s[{M1}:{M1+1}], 1, v{vT0}")
    A(f"v_cmp_eq_u32 s[{M2}:{M2+1}], 2, v{vT0}")
    A(f"v_cmp_eq_u32 s[{M3}:{M3+1}], 3, v{vT0}")
    A(f"v_lshrrev_b32 v{vT0}, 2, v{vM}")
    A(f"v_cmp_eq_u32 s[{MD}:{MD+1}], v{vG}, v{vT0}")

    A("s_waitcnt vmcnt(24) lgkmcnt(0)")
    A("s_barrier")
    reads(0, 0, buf[0])
    for c in range(8):
        reads(c, 1, buf[1])
        A("s_waitcnt lgkmcnt(12)")
        mfmas(buf[0])
        A("s_waitcnt lgkmcnt(0)")
        if c < 7:
            out = min(2, 7 - (c + 1)) * 8
            A(f"s_waitcnt vmcnt({out})")
            A("s_barrier")
            if c + 4 < 8:
                dma_chunk(c + 4)
            reads(c + 1, 0, buf[0])
        mfmas(buf[1])

    V.n = mark
    t = [V() for _ in range(8)]
    vMean, vRstd = V(2, 2), None
    vSt = V()
    for (sm, sq, base) in ((Ssum, Ssq, None), (Hsum, Hsq, 0)):
        A(f"v_cndmask_b32 v{t[0]}, v{sq}, v{sq+1}, s[{M1}:{M1+1}]")
        A(f"v_cndmask_b32 v{t[0]}, v{t[0]}, v{sq+2}, s[{M2}:{M2+1}]")
        A(f"v_cndmask_b32 v{t[0]}, v{t[0]}, v{sq+3}, s[{M3}:{M3+1}]")
        pr = vMean if base is None else t[4]
        if base is not None:
            assert t[4] % 2 == 0 or True
        ln_stats(A, sm, t[0], pr if base is None else t[4], (pr + 1) if base is None else t[5], t[1], t[2])
    vHm = V(2, 2)
    A(f"v_mov_b32 v{vHm}, v{t[4]}")
    A(f"v_mov_b32 v{vHm+1}, v{t[5]}")
    A(f"v_lshlrev_b32 v{vSt}, 3, v{vM}")
    A(f"v_add_u32 v{vSt}, {STATS}, v{vSt}")
    A("s_lshl_b32 s39, s3, 7")
    A(f"v_add_u32 v{t[0]}, s39, v{vSt}")
    A(f"s_mov_b64 exec, s[{MD}:{MD+1}]")
    A(f"ds_write_b64 v{t[0]}, {vr(vMean,2)} offset:128")
    A(f"ds_write_b64 v{vSt}, {vr(vHm,2)}")
    A("s_mov_b64 exec, -1")
    A("s_waitcnt lgkmcnt(0)")
    A("s_barrier")
    SR = [V(2, 2) for _ in range(5)]
    SV = [V(8, 4) for _ in range(5)]
    vSg = V()
    A(f"v_lshlrev_b32 v{vSg}, 5, v{vG}")
    A(f"v_add_u32 v{vSg}, {STATS}, v{vSg}")
    for f in range(5):
        A(f"ds_read_b64 {vr(SR[f],2)}, v{vSt} offset:{128*f}")
    for f in range(5):
        A(f"ds_read_b128 {vr(SV[f],4)}, v{vSg} offset:{128*f}")
        A(f"ds_read_b128 {vr(SV[f]+4,4)}, v{vSg} offset:{128*f+16}")
    cq, ck = V(4, 4), V(4, 4)
    cv = V()
    A(f"v_lshlrev_b32 v{t[0]}, 2, v{vM}")
    A(f"ds_bpermute_b32 v{cv}, v{t[0]}, v{Dv[0]}")
    for i in range(4):
        A(f"v_mov_b32_dpp v{cq+i}, v{Dq[0]+i} row_newbcast:0 row_mask:0xf bank_mask:0xf")
        A(f"v_mov_b32_dpp v{ck+i}, v{Dk[0]+i} row_newbcast:0 row_mask:0xf bank_mask:0xf")
    A("s_waitcnt lgkmcnt(0)")
    Qp = [None] + [V(2, 2) for _ in range(4)]
    Kp = [V(2, 2) for _ in range(5)]
    VtA, VtB = V(6, 2), V(6, 2)
    Vt = {0: VtA, 1: VtA + 2, 3: VtA + 4, 2: VtB + 2, 4: VtB + 4}

    def ln_rowlane(D, cs, sr, dst):
        for i in range(4):
            A(f"v_fma_f32 v{D+i}, -v{sr}, v{cs+i}, v{D+i}")
        for i in range(4):
            A(f"v_mul_f32 v{D+i}, v{sr+1}, v{D+i}")
        A(f"v_cvt_pk_bf16_f32 v{dst}, v{D}, v{D+1}")
        A(f"v_cvt_pk_bf16_f32 v{dst+1}, v{D+2}, v{D+3}")

    for f in range(5):
        ln_rowlane(Dk[f], ck, SR[f], Kp[f])
    for f in range(1, 5):
        ln_rowlane(Dq[f], cq, SR[f], Qp[f])
    prev = {1: 0, 2: 0, 3: 1, 4: 2}
    Sp = {f: Dq[f] for f in range(1, 5)}
    Ss = {f: Dk[f] for f in range(1, 5)}
    for f in range(1, 5):
        A(f"v_mfma_f32_16x16x16_bf16 {vr(Sp[f],4)}, {vr(Kp[prev[f]],2)}, {vr(Qp[f],2)}, 0")
        A(f"v_mfma_f32_16x16x16_bf16 {vr(Ss[f],4)}, {vr(Kp[f],2)}, {vr(Qp[f],2)}, 0")
    for f in range(5):
        D = Dv[f]
        for i in range(4):
            A(f"v_fma_f32 v{D+i}, -v{SV[f]+2*i}, v{cv}, v{D+i}")
        for i in range(4):
            A(f"v_mul_f32 v{D+i}, v{SV[f]+2*i+1}, v{D+i}")
        A(f"v_cvt_pk_bf16_f32 v{Vt[f]}, v{D}, v{D+1}")
        A(f"v_cvt_pk_bf16_f32 v{Vt[f]+1}, v{D+2}, v{D+3}")
    A(f"v_mov_b32 v{VtB}, v{VtA}")
    A(f"v_mov_b32 v{VtB+1}, v{VtA+1}")
    NEG = V()
    A(f"v_mov_b32 v{NEG}, 0xff800000")
    pm = {1: MPE, 2: MPO, 3: MP9, 4: MP9}
    F = range(1, 5)
    S8 = {f: [Sp[f] + i for i in range(4)] + [Ss[f] + i for i in range(4)] for f in F}
    pk = {f: Dv[f] for f in F}
    mx = {f: V() for f in F}
    m2 = {f: V() for f in F}
    for f in F:
        for i in range(4):
            A(f"v_cvt_pk_bf16_f32 v{pk[f]+i}, v{S8[f][2*i]}, v{S8[f][2*i+1]}")
    for f in F:
        for i in range(4):
            A(f"v_lshlrev_b32 v{S8[f][2*i]}, 16, v{pk[f]+i}")
            A(f"v_and_b32 v{S8[f][2*i+1]}, 0xffff0000, v{pk[f]+i}")
    for f in F:
        for i in range(4):
            A(f"v_cndmask_b32 v{S8[f][i]}, v{NEG}, v{S8[f][i]}, s[{pm[f]+2*i}:{pm[f]+2*i+1}]")
            A(f"v_cndmask_b32 v{S8[f][4+i]}, v{NEG}, v{S8[f][4+i]}, s[{MS+2*i}:{MS+2*i+1}]")
    for f in F:
        s = S8[f]
        A(f"v_max3_f32 v{mx[f]}, v{s[0]}, v{s[1]}, v{s[2]}")
        A(f"v_max3_f32 v{m2[f]}, v{s[3]}, v{s[4]}, v{s[5]}")
        A(f"v_max3_f32 v{mx[f]}, v{mx[f]}, v{s[6]}, v{s[7]}")
        A(f"v_max_f32 v{mx[f]}, v{mx[f]}, v{m2[f]}")

    def xreduce(op):
        for sw in ("v_permlane16_swap_b32", "v_permlane32_swap_b32"):
            for f in F:
                A(f"v_mov_b32 v{m2[f]}, v{mx[f]}")
            for f in F:
                A(f"{sw} v{mx[f]}, v{m2[f]}")
            for f in F:
                A(f"{op} v{mx[f]}, v{mx[f]}, v{m2[f]}")

    xreduce("v_max_f32")
    CL = "0x3eb8aa3b"
    for f in F:
        A(f"v_mul_f32 v{mx[f]}, {CL}, v{mx[f]}")
    A(f"v_mov_b32 v{t[0]}, {CL}")
    for f in F:
        for i in range(8):
            A(f"v_fma_f32 v{S8[f][i]}, v{S8[f][i]}, v{t[0]}, -v{mx[f]}")
    for f in F:
        for i in range(8):
            A(f"v_exp_f32 v{S8[f][i]}, v{S8[f][i]}")
    for f in F:
        s = S8[f]
        A(f"v_add_f32 v{mx[f]}, v{s[0]}, v{s[1]}")
        A(f"v_add_f32 v{m2[f]}, v{s[2]}, v{s[3]}")
        A(f"v_add_f32 v{mx[f]}, v{mx[f]}, v{s[4]}")
        A(f"v_add_f32 v{m2[f]}, v{m2[f]}, v{s[5]}")
        A(f"v_add_f32 v{mx[f]}, v{mx[f]}, v{s[6]}")
        A(f"v_add_f32 v{m2[f]}, v{m2[f]}, v{s[7]}")
        A(f"v_add_f32 v{mx[f]}, v{mx[f]}, v{m2[f]}")
    xreduce("v_add_f32")
    for f in F:
        A(f"v_rcp_f32 v{mx[f]}, v{mx[f]}")
    for f in F:
        for i in range(8):
            A(f"v_mul_f32 v{S8[f][i]}, v{S8[f][i]}, v{mx[f]}")
    for f in F:
        for i in range(4):
            A(f"v_cvt_pk_bf16_f32 v{pk[f]+i}, v{S8[f][2*i]}, v{S8[f][2*i+1]}")
    for f in F:
        a = Vt[f] - 2
        A(f"v_mfma_f32_16x16x32_bf16 {vr(Sp[f],4)}, {vr(a,4)}, {vr(pk[f],4)}, 0")
    A("s_lshl_b32 s39, s22, 16")
    A("s_lshl_b32 s26, s23, 11")
    A("s_add_u32 s39, s39, s26")
    A("s_lshr_b32 s26, s3, 1")
    A("s_lshl_b32 s26, s26, 10")
    A("s_add_u32 s39, s39, s26")
    A("s_and_b32 s26, s3, 1")
    A("s_lshl_b32 s26, s26, 3")
    A("s_add_u32 s39, s39, s26")
    A(f"v_lshlrev_b32 v{t[0]}, 4, v{vL}")
    for f in F:
        A(f"v_cvt_pk_bf16_f32 v{pk[f]}, v{Sp[f]}, v{Sp[f]+1}")
        A(f"v_cvt_pk_bf16_f32 v{pk[f]+1}, v{Sp[f]+2}, v{Sp[f]+3}")
        A(f"buffer_store_dwordx2 {vr(pk[f],2)}, v{t[0]}, s[16:19], s39 offen")
        if f < 4:
            A("s_add_u32 s39, s39, 16384")
    A(f"{END}:")
    A("s_endpgm")
    return kern_hdr(name) + A.finish(), desc(name, V.hi), 149504


def gemm64_addr(A, V, vL, vG, t):
    vWd = V()
    vB = [V() for _ in range(4)]
    A(f"v_lshrrev_b32 v{t[0]}, 3, v{vL}")
    A(f"v_and_b32 v{t[1]}, 7, v{vL}")
    A(f"v_and_b32 v{t[2]}, 6, v{t[0]}")
    A(f"v_xor_b32 v{t[1]}, v{t[1]}, v{t[2]}")
    A(f"v_lshlrev_b32 v{t[1]}, 4, v{t[1]}")
    A(f"v_lshl_add_u32 v{vWd}, v{t[0]}, 10, v{t[1]}")
    A(f"v_bfe_u32 v{t[0]}, v{vL}, 2, 2")
    A(f"v_lshl_add_u32 v{t[0]}, v{vG}, 2, v{t[0]}")
    A(f"v_bfe_u32 v{t[1]}, v{t[0]}, 1, 2")
    A(f"v_and_b32 v{t[2]}, 3, v{vL}")
    A(f"v_lshlrev_b32 v{t[2]}, 3, v{t[2]}")
    A(f"v_lshl_add_u32 v{t[2]}, v{t[1]}, 5, v{t[2]}")
    A(f"v_lshl_add_u32 v{vB[0]}, v{t[0]}, 7, v{t[2]}")
    for j in range(1, 4):
        A(f"v_xor_b32 v{vB[j]}, {32*j}, v{vB[0]}")
    return vWd, vB


def stageB(name):
    A = Asm()
    END = name + "_end"
    A(f"s_cmp_ge_u32 s2, 256")
    A(f"s_cbranch_scc1 {END}")
    A("s_load_dwordx2 s[4:5], s[0:1], 0")
    A("s_load_dwordx2 s[6:7], s[0:1], 16")
    A("s_load_dwordx2 s[20:21], s[0:1], 64")
    V = Alloc(1)
    vL, vM, vG = V(), V(), V()
    t = [V() for _ in range(4)]
    A(f"v_lshrrev_b32 v{t[0]}, 6, v0")
    A(f"v_and_b32 v{vL}, 63, v0")
    A(f"v_readfirstlane_b32 s3, v{t[0]}")
    A(f"v_and_b32 v{vM}, 15, v{vL}")
    A(f"v_lshrrev_b32 v{vG}, 4, v{vL}")
    A("s_and_b32 s22, s2, 7")
    A("s_lshr_b32 s23, s2, 3")
    A("s_lshr_b32 s24, s23, 3")
    A("s_lshl_b32 s22, s22, 2")
    A("s_add_u32 s22, s22, s24")
    A("s_and_b32 s23, s23, 7")
    vWd, vB = gemm64_addr(A, V, vL, vG, t)
    vL16 = V()
    A(f"v_lshlrev_b32 v{vL16}, 4, v{vL}")
    vXo = V()
    A(f"v_lshlrev_b32 v{t[0]}, 3, v{vG}")
    A(f"v_lshl_add_u32 v{vXo}, v{vM}, 11, v{t[0]}")
    A("s_lshl_b32 s25, s22, 2")
    A("s_add_u32 s25, s25, s3")
    A("s_lshl_b32 s26, s25, 14")
    A("s_lshl_b32 s27, s3, 13")
    A("s_lshl_b32 s28, s23, 7")
    A("s_add_u32 s27, s27, s28")
    A("s_lshl_b32 s29, s3, 10")
    A("s_lshl_b32 s30, s22, 16")
    A("s_lshr_b32 s31, s3, 1")
    A("s_lshl_b32 s31, s31, 15")
    A("s_add_u32 s30, s30, s31")
    A("s_and_b32 s31, s3, 1")
    A("s_lshl_b32 s31, s31, 10")
    A("s_add_u32 s30, s30, s31")
    A("s_add_u32 s30, s30, s28")
    A("s_waitcnt lgkmcnt(0)")
    srd(A, 8, 4, 5, 0x200000)
    srd(A, 12, 6, 7, 0x80000)
    srd(A, 16, 20, 21, O_SZ, O_OFF)
    srd(A, 32, 20, 21, H_SZ, H_OFF)
    X = [V(4, 4) for _ in range(16)]
    for p in range(16):
        A(f"s_add_u32 m0, s29, {p*4096}")
        A(f"s_add_u32 s24, s27, {p*32768}")
        A(f"buffer_load_dwordx4 v{vWd}, s[12:15], s24 offen lds")
        if p % 4 == 0 and p:
            A("s_add_u32 s26, s26, 4096")
        off = f" offset:{(p&3)*1024}" if p & 3 else ""
        A(f"buffer_load_dwordx4 {vr(X[p],4)}, v{vL16}, s[16:19], s26 offen{off}")
    RX = [V(2, 2) for _ in range(4)]
    for j in range(4):
        off = f" offset:{j*32}" if j else ""
        A(f"buffer_load_dwordx2 {vr(RX[j],2)}, v{vXo}, s[8:11], s30 offen{off}")
    D = [V(4, 4) for _ in range(4)]
    for b in D:
        for i in range(4):
            A(f"v_mov_b32 v{b+i}, 0")
    buf = [[V(4, 4) for _ in range(8)] for _ in range(2)]

    def reads(pair, B):
        for pp in range(2):
            p = 2 * pair + pp
            for j in range(4):
                for hh in range(2):
                    A(f"ds_read_b64_tr_b16 {vr(B[pp*4+j]+2*hh,2)}, v{vB[j]} offset:{p*4096+hh*2048}")

    def mfmas(pair, B):
        for pp in range(2):
            p = 2 * pair + pp
            for j in range(4):
                A(f"v_mfma_f32_16x16x32_bf16 {vr(D[j],4)}, {vr(B[pp*4+j],4)}, {vr(X[p],4)}, {vr(D[j],4)}")

    for pair in range(8):
        A(f"s_waitcnt vmcnt({4 + 28 - 4*(pair+1)})")
        A("s_barrier")
        reads(pair, buf[pair & 1])
        if pair:
            A("s_waitcnt lgkmcnt(16)") if False else None
            mfmas(pair - 1, buf[(pair - 1) & 1])
        A("s_waitcnt lgkmcnt(0)")
    mfmas(7, buf[1])
    A("s_waitcnt vmcnt(0)")
    A("s_lshl_b32 s26, s25, 14")
    A("s_lshl_b32 s24, s23, 11")
    A("s_add_u32 s26, s26, s24")
    OUT = [V(4, 4) for _ in range(2)]
    for j in range(4):
        d = D[j]
        A(f"v_cvt_pk_bf16_f32 v{t[0]}, v{d}, v{d+1}")
        A(f"v_cvt_pk_bf16_f32 v{t[1]}, v{d+2}, v{d+3}")
        A(f"v_lshlrev_b32 v{d}, 16, v{t[0]}")
        A(f"v_and_b32 v{d+1}, 0xffff0000, v{t[0]}")
        A(f"v_lshlrev_b32 v{d+2}, 16, v{t[1]}")
        A(f"v_and_b32 v{d+3}, 0xffff0000, v{t[1]}")
        A(f"v_lshlrev_b32 v{t[0]}, 16, v{RX[j]}")
        A(f"v_and_b32 v{t[1]}, 0xffff0000, v{RX[j]}")
        A(f"v_lshlrev_b32 v{t[2]}, 16, v{RX[j]+1}")
        A(f"v_and_b32 v{t[3]}, 0xffff0000, v{RX[j]+1}")
        for i in range(4):
            A(f"v_add_f32 v{d+i}, v{d+i}, v{t[i]}")
        o = OUT[j >> 1] + 2 * (j & 1)
        A(f"v_cvt_pk_bf16_f32 v{o}, v{d}, v{d+1}")
        A(f"v_cvt_pk_bf16_f32 v{o+1}, v{d+2}, v{d+3}")
        if j & 1:
            off = " offset:1024" if j >> 1 else ""
            A(f"buffer_store_dwordx4 {vr(OUT[j>>1],4)}, v{vL16}, s[32:35], s26 offen{off}")
    A(f"{END}:")
    A("s_endpgm")
    return kern_hdr(name) + A.finish(), desc(name, V.hi), 65536


def stageC(name):
    A = Asm()
    END = name + "_end"
    A("s_lshr_b32 s23, s2, 3")
    A("s_and_b32 s24, s23, 15")
    A(f"s_cmp_ge_u32 s2, 256")
    A(f"s_cbranch_scc1 {END}")
    A(f"s_cmp_eq_u32 s24, 15")
    A(f"s_cbranch_scc1 {END}")
    A("s_load_dwordx2 s[6:7], s[0:1], 32")
    A("s_load_dwordx2 s[20:21], s[0:1], 64")
    V = Alloc(1)
    vL, vM, vG = V(), V(), V()
    t = [V() for _ in range(6)]
    A(f"v_lshrrev_b32 v{t[0]}, 6, v0")
    A(f"v_and_b32 v{vL}, 63, v0")
    A(f"v_readfirstlane_b32 s3, v{t[0]}")
    A(f"v_and_b32 v{vM}, 15, v{vL}")
    A(f"v_lshrrev_b32 v{vG}, 4, v{vL}")
    A("s_and_b32 s22, s2, 7")
    A("s_lshr_b32 s23, s23, 4")
    A("s_lshl_b32 s22, s22, 1")
    A("s_add_u32 s22, s22, s23")
    CS = 98304
    vWd = [V() for _ in range(3)]
    for tt in range(3):
        A(f"v_add_u32 v{t[0]}, {64*tt}, v{vL}")
        A(f"v_mul_u32_u24 v{t[1]}, 171, v{t[0]}")
        A(f"v_lshrrev_b32 v{t[1]}, 11, v{t[1]}")
        A(f"v_mul_u32_u24 v{t[2]}, 12, v{t[1]}")
        A(f"v_sub_u32 v{t[2]}, v{t[0]}, v{t[2]}")
        A(f"v_bfe_u32 v{t[3]}, v{t[1]}, 2, 1")
        A(f"v_lshlrev_b32 v{t[3]}, 1, v{t[3]}")
        A(f"v_xor_b32 v{t[2]}, v{t[2]}, v{t[3]}")
        A(f"v_lshlrev_b32 v{t[2]}, 4, v{t[2]}")
        A(f"v_mul_u32_u24 v{t[1]}, 2752, v{t[1]}")
        A(f"v_add_u32 v{vWd[tt]}, v{t[1]}, v{t[2]}")
    vB = [[V(), V()], [V(), V()]]
    A(f"v_bfe_u32 v{t[0]}, v{vL}, 2, 2")
    A(f"v_lshl_add_u32 v{t[0]}, v{vG}, 2, v{t[0]}")
    A(f"v_mul_u32_u24 v{t[0]}, 192, v{t[0]}")
    A(f"v_and_b32 v{t[1]}, 3, v{vL}")
    A(f"v_lshl_add_u32 v{t[0]}, v{t[1]}, 3, v{t[0]}")
    A(f"v_and_b32 v{t[1]}, 1, v{vG}")
    A(f"v_lshlrev_b32 v{t[1]}, 5, v{t[1]}")
    A(f"v_add_u32 v{vB[0][0]}, v{t[0]}, v{t[1]}")
    A(f"v_sub_u32 v{vB[0][1]}, v{t[0]}, v{t[1]}")
    A(f"v_add_u32 v{vB[1][0]}, 49152, v{vB[0][0]}")
    A(f"v_add_u32 v{vB[1][1]}, 49152, v{vB[0][1]}")
    vL16 = V()
    A(f"v_lshlrev_b32 v{vL16}, 4, v{vL}")
    A("s_lshl_b32 s25, s22, 3")
    A("s_lshl_b32 s26, s3, 1")
    A("s_add_u32 s25, s25, s26")
    A("s_lshl_b32 s26, s25, 14")
    A("s_add_u32 s27, s26, 16384")
    A("s_mul_i32 s28, s3, 44032")
    A("s_mul_i32 s29, s24, 192")
    A("s_add_u32 s28, s28, s29")
    A("s_mul_i32 s29, s3, 3072")
    A("s_waitcnt lgkmcnt(0)")
    srd(A, 12, 6, 7, 512 * 2752)
    srd(A, 16, 20, 21, H_SZ, H_OFF)
    srd(A, 32, 20, 21, HID_SZ, HID_OFF)
    vOnes = V(4, 4)
    for i in range(4):
        A(f"v_mov_b32 v{vOnes+i}, 0")
    A(f"v_lshlrev_b32 v{t[0]}, 3, v{vL}")
    A(f"v_add_u32 v{t[0]}, {CS}, v{t[0]}")
    A(f"ds_write_b64 v{t[0]}, {vr(vOnes,2)}")
    for c in range(8):
        A(f"s_add_u32 s30, s28, {c*64*2752}")
        for tt in range(3):
            A(f"s_add_u32 m0, s29, {c*12288 + tt*1024}")
            A(f"buffer_load_dwordx4 v{vWd[tt]}, s[12:15], s30 offen lds")
        for pp in range(2):
            p = 2 * c + pp
            if p % 4 == 0 and p:
                A("s_add_u32 s26, s26, 4096")
                A("s_add_u32 s27, s27, 4096")
            off = f" offset:{(p&3)*1024}" if p & 3 else ""
            for rf in range(2):
                A(f"buffer_load_dwordx4 {vr((p*2+rf)*4,4,'a')}, v{vL16}, s[16:19], s{26+rf} offen{off}")
    for i in range(4):
        A(f"v_mov_b32 v{vOnes+i}, {ONES}")
    D = [[V(4, 4) for _ in range(6)] for _ in range(2)]
    SS = [V(4, 4) for _ in range(2)]
    SQ = [V(4, 4) for _ in range(2)]
    CSD = [V(4, 4) for _ in range(6)]
    for b in D[0] + D[1] + SS + SQ + CSD:
        for i in range(4):
            A(f"v_mov_b32 v{b+i}, 0")
    buf = [[V(4, 4) for _ in range(6)] for _ in range(2)]
    M1, M2, M3, MD, M0_ = 40, 42, 44, 46, 48
    A(f"v_and_b32 v{t[0]}, 3, v{vM}")
    A(f"v_cmp_eq_u32 s[{M1}:{M1+1}], 1, v{t[0]}")
    A(f"v_cmp_eq_u32 s[{M2}:{M2+1}], 2, v{t[0]}")
    A(f"v_cmp_eq_u32 s[{M3}:{M3+1}], 3, v{t[0]}")
    A(f"v_lshrrev_b32 v{t[0]}, 2, v{vM}")
    A(f"v_cmp_eq_u32 s[{MD}:{MD+1}], v{vG}, v{t[0]}")
    A(f"v_cmp_eq_u32 s[{M0_}:{M0_+1}], 0, v{vM}")

    def reads(p, B):
        half = p >> 3
        for j in range(6):
            for hh in range(2):
                A(f"ds_read_b64_tr_b16 {vr(B[j]+2*hh,2)}, v{vB[half][j&1]} offset:{(p&7)*6144+hh*3072+j*32}")

    def mfmas(p, B):
        for j in range(6):
            for rf in range(2):
                x = vr((p * 2 + rf) * 4, 4, 'a')
                A(f"v_mfma_f32_16x16x32_bf16 {vr(D[rf][j],4)}, {vr(B[j],4)}, {x}, {vr(D[rf][j],4)}")
        for rf in range(2):
            x = vr((p * 2 + rf) * 4, 4, 'a')
            A(f"v_mfma_f32_16x16x32_bf16 {vr(SS[rf],4)}, {vr(vOnes,4)}, {x}, {vr(SS[rf],4)}")
            A(f"v_mfma_f32_16x16x32_bf16 {vr(SQ[rf],4)}, {x}, {x}, {vr(SQ[rf],4)}")
        lab = f"{name}_cs{p}"
        A(f"s_cmp_lg_u32 s3, {p&3}")
        A(f"s_cbranch_scc1 {lab}")
        for j in range(6):
            A(f"v_mfma_f32_16x16x32_bf16 {vr(CSD[j],4)}, {vr(B[j],4)}, {vr(vOnes,4)}, {vr(CSD[j],4)}")
        A(f"{lab}:")

    A("s_waitcnt vmcnt(49) lgkmcnt(0)")
    A("s_barrier")
    reads(0, buf[0])
    for c in range(8):
        reads(2 * c + 1, buf[1])
        A("s_waitcnt lgkmcnt(12)")
        mfmas(2 * c, buf[0])
        A("s_waitcnt lgkmcnt(0)")
        if c < 7:
            A(f"s_waitcnt vmcnt({7*(6-c)})")
            A("s_barrier")
            reads(2 * c + 2, buf[0])
        mfmas(2 * c + 1, buf[1])
    A("s_nop 7")
    A(f"v_lshlrev_b32 v{t[0]}, 4, v{vG}")
    A(f"v_add_u32 v{t[0]}, {CS}, v{t[0]}")
    A(f"s_mov_b64 exec, s[{M0_}:{M0_+1}]")
    for j in range(6):
        for i in range(4):
            A(f"ds_add_f32 v{t[0]}, v{CSD[j]+i} offset:{64*j+4*i}")
    A("s_mov_b64 exec, -1")
    MR = [V(2, 2) for _ in range(2)]
    z = V()
    for rf in range(2):
        sq = SQ[rf]
        A(f"v_cndmask_b32 v{t[1]}, v{sq}, v{sq+1}, s[{M1}:{M1+1}]")
        A(f"v_cndmask_b32 v{t[1]}, v{t[1]}, v{sq+2}, s[{M2}:{M2+1}]")
        A(f"v_cndmask_b32 v{t[1]}, v{t[1]}, v{sq+3}, s[{M3}:{M3+1}]")
        A(f"v_cndmask_b32 v{t[1]}, 0, v{t[1]}, s[{MD}:{MD+1}]")
        for sw in ("v_permlane16_swap_b32", "v_permlane32_swap_b32"):
            A(f"v_mov_b32 v{z}, v{t[1]}")
            A(f"{sw} v{t[1]}, v{z}")
            A(f"v_add_f32 v{t[1]}, v{t[1]}, v{z}")
        ln_stats(A, SS[rf], t[1], MR[rf], MR[rf] + 1, t[2], t[3])
    A("s_waitcnt lgkmcnt(0)")
    A("s_barrier")
    for j in range(6):
        A(f"ds_read_b128 {vr(CSD[j],4)}, v{t[0]} offset:{64*j}")
    A("s_mul_i32 s26, s25, 44032")
    A("s_mul_i32 s27, s24, 3072")
    A("s_add_u32 s26, s26, s27")
    A("s_add_u32 s27, s26, 44032")
    A("s_waitcnt lgkmcnt(0)")
    OUT = [V(4, 4) for _ in range(2)]
    for jj in range(3):
        for rf in range(2):
            for jo in range(2):
                j = 2 * jj + jo
                d = D[rf][j]
                for i in range(4):
                    A(f"v_fma_f32 v{d+i}, -v{MR[rf]}, v{CSD[j]+i}, v{d+i}")
                for i in range(4):
                    A(f"v_mul_f32 v{d+i}, v{MR[rf]+1}, v{d+i}")
                for i in range(4):
                    A(f"v_max_f32 v{d+i}, 0, v{d+i}")
                A(f"v_cvt_pk_bf16_f32 v{OUT[rf]+2*jo}, v{d}, v{d+1}")
                A(f"v_cvt_pk_bf16_f32 v{OUT[rf]+2*jo+1}, v{d+2}, v{d+3}")
            off = f" offset:{jj*1024}" if jj else ""
            A(f"buffer_store_dwordx4 {vr(OUT[rf],4)}, v{vL16}, s[32:35], s{26+rf} offen{off}")
        if jj == 0:
            A("s_cmp_eq_u32 s24, 14")
            A(f"s_cbranch_scc1 {END}")
    A(f"{END}:")
    A("s_endpgm")
    return kern_hdr(name) + A.finish(), desc(name, V.hi, 128), 98304 + 512


def stageD(name):
    A = Asm()
    END = name + "_end"
    A(f"s_cmp_ge_u32 s2, 256")
    A(f"s_cbranch_scc1 {END}")
    A("s_load_dwordx4 s[4:7], s[0:1], 40")
    A("s_load_dwordx2 s[20:21], s[0:1], 64")
    V = Alloc(1)
    vL, vM, vG = V(), V(), V()
    t = [V() for _ in range(4)]
    A(f"v_lshrrev_b32 v{t[0]}, 6, v0")
    A(f"v_and_b32 v{vL}, 63, v0")
    A(f"v_readfirstlane_b32 s3, v{t[0]}")
    A(f"v_and_b32 v{vM}, 15, v{vL}")
    A(f"v_lshrrev_b32 v{vG}, 4, v{vL}")
    A("s_and_b32 s22, s2, 7")
    A("s_lshr_b32 s23, s2, 3")
    A("s_lshr_b32 s24, s23, 3")
    A("s_lshl_b32 s22, s22, 2")
    A("s_add_u32 s22, s22, s24")
    A("s_and_b32 s23, s23, 7")
    vWd, vB0 = gemm64_addr(A, V, vL, vG, t)
    vB = [vB0, [V() for _ in range(4)], [V() for _ in range(4)]]
    for h in range(1, 3):
        for j in range(4):
            A(f"v_add_u32 v{vB[h][j]}, {65536*h}, v{vB0[j]}")
    vL16 = V()
    A(f"v_lshlrev_b32 v{vL16}, 4, v{vL}")
    A("s_lshl_b32 s25, s22, 2")
    A("s_add_u32 s25, s25, s3")
    A("s_mul_i32 s26, s25, 44032")
    A("s_lshl_b32 s27, s3, 13")
    A("s_lshl_b32 s28, s23, 7")
    A("s_add_u32 s27, s27, s28")
    A("s_lshl_b32 s29, s3, 10")
    A("s_lshl_b32 s30, s25, 14")
    A("s_lshl_b32 s31, s23, 11")
    A("s_add_u32 s30, s30, s31")
    A("s_waitcnt lgkmcnt(0)")
    srd(A, 12, 4, 5, 1376 * 1024)
    srd(A, 8, 6, 7, 0x200000)
    srd(A, 16, 20, 21, HID_SZ, HID_OFF)
    srd(A, 32, 20, 21, H_SZ, H_OFF)
    NS, AHEAD = 40, 28

    def loads(p):
        A(f"s_add_u32 m0, s29, {(p%NS)*4096}")
        A(f"s_add_u32 s24, s27, {p*32768}")
        A(f"buffer_load_dwordx4 v{vWd}, s[12:15], s24 offen lds")
        if p % 4 == 0 and p:
            A("s_add_u32 s26, s26, 4096")
        off = f" offset:{(p&3)*1024}" if p & 3 else ""
        A(f"buffer_load_dwordx4 {vr(4*p,4,'a')}, v{vL16}, s[16:19], s26 offen{off}")

    RH = [V(4, 4) for _ in range(2)]
    A(f"buffer_load_dwordx4 {vr(RH[0],4)}, v{vL16}, s[32:35], s30 offen")
    A(f"buffer_load_dwordx4 {vr(RH[1],4)}, v{vL16}, s[32:35], s30 offen offset:1024")
    for p in range(AHEAD):
        loads(p)
    D = [V(4, 4) for _ in range(4)]
    for b in D:
        for i in range(4):
            A(f"v_mov_b32 v{b+i}, 0")
    buf = [[V(4, 4) for _ in range(8)] for _ in range(2)]
    groups = [(p, min(p + 2, 43)) for p in range(0, 43, 2)]

    def reads(gr, B):
        for p in range(*gr):
            s = p % NS
            pp = p - gr[0]
            for j in range(4):
                for hh in range(2):
                    A(f"ds_read_b64_tr_b16 {vr(B[pp*4+j]+2*hh,2)}, v{vB[s>>4][j]} offset:{(s&15)*4096+hh*2048}")

    def mfmas(gr, B):
        for p in range(*gr):
            pp = p - gr[0]
            for j in range(4):
                A(f"v_mfma_f32_16x16x32_bf16 {vr(D[j],4)}, {vr(B[pp*4+j],4)}, {vr(4*p,4,'a')}, {vr(D[j],4)}")

    issued = AHEAD
    for gi, gr in enumerate(groups):
        A(f"s_waitcnt vmcnt({2*(issued - gr[1])})")
        A("s_barrier")
        for p in range(issued, min(issued + 2, 43)):
            loads(p)
        issued = min(issued + 2, 43)
        reads(gr, buf[gi & 1])
        if gi:
            mfmas(groups[gi - 1], buf[(gi - 1) & 1])
        A("s_waitcnt lgkmcnt(0)")
    mfmas(groups[-1], buf[(len(groups) - 1) & 1])
    A("s_lshl_b32 s30, s22, 16")
    A("s_lshr_b32 s31, s3, 1")
    A("s_lshl_b32 s31, s31, 15")
    A("s_add_u32 s30, s30, s31")
    A("s_and_b32 s31, s3, 1")
    A("s_lshl_b32 s31, s31, 10")
    A("s_add_u32 s30, s30, s31")
    A("s_add_u32 s30, s30, s28")
    vOo = V()
    A(f"v_and_b32 v{t[0]}, 1, v{vG}")
    A(f"v_lshlrev_b32 v{t[0]}, 5, v{t[0]}")
    A(f"v_lshrrev_b32 v{t[1]}, 1, v{vG}")
    A(f"v_lshl_add_u32 v{t[0]}, v{t[1]}, 4, v{t[0]}")
    A(f"v_lshl_add_u32 v{vOo}, v{vM}, 11, v{t[0]}")
    OUT = [V(4, 4) for _ in range(2)]
    for j in range(4):
        d = D[j]
        rx = RH[j >> 1] + 2 * (j & 1)
        A(f"v_cvt_pk_bf16_f32 v{t[0]}, v{d}, v{d+1}")
        A(f"v_cvt_pk_bf16_f32 v{t[1]}, v{d+2}, v{d+3}")
        A(f"v_lshlrev_b32 v{d}, 16, v{t[0]}")
        A(f"v_and_b32 v{d+1}, 0xffff0000, v{t[0]}")
        A(f"v_lshlrev_b32 v{d+2}, 16, v{t[1]}")
        A(f"v_and_b32 v{d+3}, 0xffff0000, v{t[1]}")
        A(f"v_lshlrev_b32 v{t[0]}, 16, v{rx}")
        A(f"v_and_b32 v{t[1]}, 0xffff0000, v{rx}")
        A(f"v_lshlrev_b32 v{t[2]}, 16, v{rx+1}")
        A(f"v_and_b32 v{t[3]}, 0xffff0000, v{rx+1}")
        for i in range(4):
            A(f"v_add_f32 v{d+i}, v{d+i}, v{t[i]}")
        o = OUT[j >> 1]
        if j & 1 == 0:
            A(f"v_cvt_pk_bf16_f32 v{o}, v{d}, v{d+1}")
            A(f"v_cvt_pk_bf16_f32 v{o+1}, v{d+2}, v{d+3}")
        else:
            A(f"v_cvt_pk_bf16_f32 v{o+2}, v{d}, v{d+1}")
            A(f"v_cvt_pk_bf16_f32 v{o+3}, v{d+2}, v{d+3}")
            A(f"v_permlane16_swap_b32 v{o}, v{o+2}")
            A(f"v_permlane16_swap_b32 v{o+1}, v{o+3}")
            off = " offset:64" if j >> 1 else ""
            A(f"buffer_store_dwordx4 {vr(o,4)}, v{vOo}, s[8:11], s30 offen{off}")
    A(f"{END}:")
    A("s_endpgm")
    return kern_hdr(name) + A.finish(), desc(name, V.hi, 172), 163840


def build(stages="ABCD", extra_empty=0):
    fn = dict(A=stageA, B=stageB, C=stageC, D=stageD)
    ks = []
    for s in stages:
        nm = f"st{s}_kernel"
        ks.append((nm,) + fn[s](nm))
    for i in range(extra_empty):
        nm = f"e{i}_kernel"
        ks.append((nm, kern_hdr(nm) + "  s_endpgm\n", desc(nm, 8), 0))
    out = ""
    for nm, code, d, lds in ks:
        out += f"; @launch kernel={nm} grid=(256,1,1) block=(256,1,1) lds={lds}\n"
    out += '.amdgcn_target "amdgcn-amd-amdhsa--gfx950"\n.text\n'
    for nm, code, d, lds in ks:
        out += code
    out += '.section .rodata,"a"\n'
    for nm, code, d, lds in ks:
        out += d
    return out


if __name__ == "__main__":
    open("sequential_preLN__sliding_local_dilated__dense_activation_relu__prompt.s", "w").write(build())
    open("k4e2.s", "w").write(build(extra_empty=2))
```

```python
import sys
sys.path.insert(0, "work")
from asmlib import *

O_OFF, O_SZ = 0, 0x200000
H_OFF, H_SZ = 0x200000, 0x200000
HID_OFF, HID_SZ = 0x400000, 128 * 43 * 1024
ONES = "0x3f803f80"


def srd(A, b, lo, hi, size, add=0):
    if add:
        A(f"s_add_u32 s{b}, s{lo}, {add}")
        A(f"s_addc_u32 s{b+1}, s{hi}, 0")
        A(f"s_and_b32 s{b+1}, s{b+1}, 0xffff")
    else:
        A(f"s_mov_b32 s{b}, s{lo}")
        A(f"s_and_b32 s{b+1}, s{hi}, 0xffff")
    A(f"s_mov_b32 s{b+2}, {size}")
    A(f"s_mov_b32 s{b+3}, 0x20000")


def rnd_bf16(A, dst, src):
    A(f"v_cvt_pk_bf16_f32 v{dst}, v{src}, v{src}")
    A(f"v_lshlrev_b32 v{dst}, 16, v{dst}")


def ln_stats(A, vsum, vsq, vmean, vrstd, t0, t1):
    A(f"v_mul_f32 v{t0}, 0x3b000000, v{vsum}")
    A(f"v_mul_f32 v{t1}, 0x3b000000, v{vsq}")
    A(f"v_fma_f32 v{t1}, -v{t0}, v{t0}, v{t1}")
    A(f"v_max_f32 v{t1}, 0, v{t1}")
    rnd_bf16(A, vmean, t0)
    rnd_bf16(A, t1, t1)
    A(f"v_add_f32 v{t1}, 0x3727c5ac, v{t1}")
    rnd_bf16(A, t1, t1)
    A(f"v_sqrt_f32 v{t1}, v{t1}")
    rnd_bf16(A, t1, t1)
    A(f"v_rcp_f32 v{vrstd}, v{t1}")


INSTR = False
TS_OFF = 0x1000000


class TS:
    def __init__(self, A, stage):
        self.A, self.stage, self.n = A, stage, 0

    def __call__(self):
        if not INSTR:
            return
        A = self.A
        A("s_memtime s[98:99]")
        A("s_waitcnt lgkmcnt(0)")
        A(f"s_mov_b32 s{84+self.n}, s98")
        self.n += 1
        assert self.n <= 12

    def dump(self, vt):
        if not INSTR:
            return
        A = self.A
        self()
        A("s_load_dwordx2 s[98:99], s[0:1], 64")
        A("s_waitcnt lgkmcnt(0)")
        A(f"s_add_u32 s100, s98, {TS_OFF}")
        A("s_addc_u32 s101, s99, 0")
        A("s_mov_b32 s96, s100")
        A("s_and_b32 s97, s101, 0xffff")
        A("s_mov_b32 s98, 0x100000")
        A("s_mov_b32 s99, 0x20000")
        A(f"s_lshl_b32 s100, s2, 2")
        A(f"s_add_u32 s100, s100, s3")
        A(f"s_add_u32 s100, s100, {self.stage*1024}")
        A(f"s_lshl_b32 s100, s100, 6")
        A(f"v_mov_b32 v{vt+1}, 0")
        A("s_mov_b64 exec, 1")
        for i in range(self.n):
            A(f"v_mov_b32 v{vt}, s{84+i}")
            A(f"buffer_store_dword v{vt}, v{vt+1}, s[96:99], s100 offen offset:{4*i}")
        A("s_mov_b64 exec, -1")


def common_head(A, nwg):
    A(f"s_cmp_ge_u32 s2, {nwg}")
    A("s_cbranch_scc1 END")


def stageA(name):
    A = Asm()
    END = name + "_end"
    A(f"s_cmp_ge_u32 s2, 256")
    A(f"s_cbranch_scc1 {END}")
    T = TS(A, 0)
    T()
    A("s_load_dwordx4 s[4:7], s[0:1], 0")
    A("s_load_dwordx2 s[20:21], s[0:1], 64")
    V = Alloc(1)
    vL, vM, vG, vT0, vT1, vT2, vT3 = [V() for _ in range(7)]
    A(f"v_lshrrev_b32 v{vT0}, 6, v0")
    A(f"v_and_b32 v{vL}, 63, v0")
    A(f"v_readfirstlane_b32 s3, v{vT0}")
    A(f"v_and_b32 v{vM}, 15, v{vL}")
    A(f"v_lshrrev_b32 v{vG}, 4, v{vL}")
    A("s_and_b32 s22, s2, 7")
    A("s_lshr_b32 s23, s2, 3")
    A("s_lshr_b32 s24, s23, 3")
    A("s_lshl_b32 s22, s22, 2")
    A("s_add_u32 s22, s22, s24")
    A("s_and_b32 s23, s23, 7")
    SLOT0, SLOTSZ = 16384, 32768
    STATS, DUMMY = 147456, 148480
    vXd0, vXd1, vWd0, vWd1 = [V() for _ in range(4)]
    A(f"v_lshrrev_b32 v{vT0}, 3, v{vL}")
    A(f"v_and_b32 v{vT1}, 7, v{vL}")
    A(f"v_lshrrev_b32 v{vT2}, 1, v{vT0}")
    A(f"v_xor_b32 v{vT2}, v{vT1}, v{vT2}")
    A(f"v_lshlrev_b32 v{vT2}, 4, v{vT2}")
    A(f"v_lshl_add_u32 v{vXd0}, v{vT0}, 11, v{vT2}")
    A(f"v_xor_b32 v{vXd1}, 64, v{vXd0}")
    A(f"v_and_b32 v{vT2}, 2, v{vT0}")
    A(f"v_xor_b32 v{vT2}, v{vT1}, v{vT2}")
    A(f"v_lshlrev_b32 v{vT2}, 4, v{vT2}")
    A(f"v_mul_u32_u24 v{vT3}, 3072, v{vT0}")
    A(f"v_add_u32 v{vWd0}, v{vT3}, v{vT2}")
    A(f"v_xor_b32 v{vWd1}, 64, v{vWd0}")
    vHd = [V() for _ in range(4)]
    A(f"v_lshlrev_b32 v{vT0}, 4, v{vL}")
    A("s_lshl_b32 s25, s3, 6")
    for j in range(4):
        A(f"s_add_u32 s26, s25, {16*j}")
        A(f"v_xor_b32 v{vHd[j]}, s26, v{vT0}")
    A("s_lshl_b32 s27, s22, 16")
    A("s_lshr_b32 s28, s3, 1")
    A("s_lshl_b32 s28, s28, 15")
    A("s_and_b32 s29, s3, 1")
    A("s_lshl_b32 s29, s29, 10")
    A("s_add_u32 s30, s27, s28")
    A("s_add_u32 s30, s30, s29")
    A("s_add_u32 s31, s30, 16384")
    A("s_mul_i32 s32, s3, 49152")
    A("s_lshl_b32 s33, s23, 7")
    A("s_add_u32 s32, s32, s33")
    A("s_lshl_b32 s34, s3, 11")
    A("s_lshl_b32 s35, s3, 13")
    A("s_add_u32 s35, s35, s27")
    A("s_cmp_lt_u32 s3, 2")
    A("s_cselect_b32 s36, 16, 31")
    A("s_lshl_b32 s36, s36, 10")
    A("s_sub_u32 s35, s35, s36")
    A("s_lshl_b32 s37, s3, 12")
    A("s_waitcnt lgkmcnt(0)")
    srd(A, 8, 4, 5, 0x200000)
    srd(A, 12, 6, 7, 0x180000)
    srd(A, 16, 20, 21, O_SZ, O_OFF)
    vOnes = V(4, 4)
    for i in range(4):
        A(f"v_mov_b32 v{vOnes+i}, {ONES}")
    A(f"v_lshlrev_b32 v{vT0}, 4, v{vL}")
    A(f"ds_write_b128 v{vT0}, {vr(vOnes,4)}")
    A("s_cmp_eq_u32 s3, 0")
    A(f"s_cselect_b32 s38, {DUMMY}, s37")
    for j in range(4):
        if j == 0:
            A("s_mov_b32 m0, s38")
        else:
            A(f"s_add_u32 m0, s37, {1024*j}")
        A(f"s_add_u32 s39, s35, {2048*j}")
        A(f"buffer_load_dwordx4 v{vHd[j]}, s[8:11], s39 offen lds")

    def dma_chunk(c):
        sb = SLOT0 + (c & 3) * SLOTSZ
        for e in range(2):
            A(f"s_add_u32 s39, s32, {c*196608 + e*24576}")
            for sg in range(3):
                A(f"s_add_u32 m0, s34, {sb + 8192 + sg*8192 + e*1024 - sg*1024}")
                off = f" offset:{sg*1024}" if sg else ""
                A(f"buffer_load_dwordx4 v{vWd1 if e else vWd0}, s[12:15], s39 offen{off} lds")
        for e in range(2):
            A(f"s_add_u32 m0, s34, {sb + e*1024 - c*128}")
            off = f" offset:{c*128}" if c else ""
            A(f"buffer_load_dwordx4 v{vXd1 if e else vXd0}, s[8:11], s{31 if e else 30} offen{off} lds")

    for c in range(4):
        dma_chunk(c)
    T()
    vXr = [[V(), V()], [V(), V()]]
    vXs = [[V(), V()], [V(), V()]]
    vWr = [V(), V()]
    vHr = [V() for _ in range(4)]
    A(f"v_lshrrev_b32 v{vT0}, 1, v{vM}")
    A(f"v_xor_b32 v{vT0}, v{vG}, v{vT0}")
    A(f"v_lshlrev_b32 v{vT0}, 4, v{vT0}")
    A(f"v_lshl_add_u32 v{vT0}, v{vM}, 7, v{vT0}")
    A(f"v_add_u32 v{vXr[0][0]}, {SLOT0}, v{vT0}")
    A(f"v_xor_b32 v{vXr[0][1]}, 64, v{vXr[0][0]}")
    A(f"v_add_u32 v{vXr[1][0]}, 65536, v{vXr[0][0]}")
    A(f"v_add_u32 v{vXr[1][1]}, 65536, v{vXr[0][1]}")
    for a in range(2):
        for b in range(2):
            A(f"v_add_u32 v{vXs[a][b]}, s34, v{vXr[a][b]}")
    A(f"v_bfe_u32 v{vT0}, v{vL}, 2, 2")
    A(f"v_and_b32 v{vT1}, 3, v{vL}")
    A(f"v_lshrrev_b32 v{vT2}, 1, v{vT0}")
    A(f"v_and_b32 v{vT3}, 1, v{vG}")
    A(f"v_lshl_add_u32 v{vT2}, v{vT3}, 1, v{vT2}")
    A(f"v_xor_b32 v{vT2}, s3, v{vT2}")
    A(f"v_lshlrev_b32 v{vT2}, 5, v{vT2}")
    A(f"v_lshl_add_u32 v{vT2}, v{vT1}, 3, v{vT2}")
    A(f"v_lshl_add_u32 v{vT0}, v{vG}, 3, v{vT0}")
    A(f"v_lshl_add_u32 v{vT2}, v{vT0}, 7, v{vT2}")
    A(f"v_add_u32 v{vWr[0]}, {SLOT0+8192}, v{vT2}")
    A(f"v_add_u32 v{vWr[1]}, 65536, v{vWr[0]}")
    A(f"v_xor_b32 v{vT0}, v{vG}, v{vM}")
    A(f"v_lshlrev_b32 v{vT0}, 4, v{vT0}")
    A(f"v_lshl_add_u32 v{vHr[0]}, v{vM}, 10, v{vT0}")
    for t in range(1, 4):
        A(f"v_xor_b32 v{vHr[t]}, {64*t}, v{vHr[0]}")
    Dq = [V(4, 4) for _ in range(5)]
    Dk = [V(4, 4) for _ in range(5)]
    Dv = [V(4, 4) for _ in range(5)]
    Ssum, Ssq, Hsum, Hsq = [V(4, 4) for _ in range(4)]
    for b in Dq + Dk + Dv + [Ssum, Ssq, Hsum, Hsq]:
        for i in range(4):
            A(f"v_mov_b32 v{b+i}, 0")
    vD = V()
    mark = V.n
    buf = []
    for _ in range(2):
        buf.append(dict(X=[V(4, 4) for _ in range(5)], XS=V(4, 4), W=[V(4, 4) for _ in range(3)]))

    def reads(c, pp, B):
        s = c & 3
        sp, so = s >> 1, (s & 1) * SLOTSZ
        P = 2 * c + pp
        for sg in range(3):
            for hh in range(2):
                A(f"ds_read_b64_tr_b16 {vr(B['W'][sg]+2*hh,2)}, v{vWr[sp]} offset:{so + sg*8192 + pp*4096 + hh*512}")
        A(f"ds_read_b128 {vr(B['X'][0],4)}, v{vHr[P&3]} offset:{(P>>2)*256}")
        for q in range(4):
            A(f"ds_read_b128 {vr(B['X'][1+q],4)}, v{vXr[sp][pp]} offset:{so + q*2048}")
        A(f"ds_read_b128 {vr(B['XS'],4)}, v{vXs[sp][pp]} offset:{so}")

    def mf(D, a, b):
        A(f"v_mfma_f32_16x16x32_bf16 {vr(D,4)}, {vr(a,4)}, {vr(b,4)}, {vr(D,4)}")

    def mfmas(B):
        for f in range(5):
            mf(Dq[f], B['W'][0], B['X'][f])
            mf(Dk[f], B['W'][1], B['X'][f])
            mf(Dv[f], B['X'][f], B['W'][2])
        mf(Hsum, vOnes, B['X'][0])
        mf(Hsq, B['X'][0], B['X'][0])
        mf(Ssum, vOnes, B['XS'])
        mf(Ssq, B['XS'], B['XS'])

    A(f"v_lshlrev_b32 v{vT0}, 2, v{vG}")
    A(f"v_sub_u32 v{vD}, v{vT0}, v{vM}")
    MS, MP9, MPE, MPO = 40, 48, 56, 64
    for r_ in range(4):
        A(f"v_add_u32 v{vT1}, {r_+7}, v{vD}")
        A(f"v_cmp_gt_u32 s[{MS+2*r_}:{MS+2*r_+1}], 8, v{vT1}")
        A(f"v_cmp_le_i32 s[{MP9+2*r_}:{MP9+2*r_+1}], {9-r_}, v{vD}")
        A(f"v_cmp_le_i32 s[{MPE+2*r_}:{MPE+2*r_+1}], {1-r_}, v{vD}")
    A(f"v_cmp_gt_u32 s[72:73], 2, v{vG}")
    A("s_cmp_eq_u32 s22, 0")
    A("s_cselect_b32 s74, 0, -1")
    A("s_mov_b32 s75, s74")
    A("s_and_b64 s[72:73], s[72:73], s[74:75]")
    for r_ in range(4):
        A(f"s_and_b64 s[{MPE+2*r_}:{MPE+2*r_+1}], s[{MPE+2*r_}:{MPE+2*r_+1}], s[72:73]")
        A(f"s_and_b64 s[{MPO+2*r_}:{MPO+2*r_+1}], s[{MP9+2*r_}:{MP9+2*r_+1}], s[74:75]")
    M1, M2, M3, MD = 76, 78, 80, 82
    A(f"v_and_b32 v{vT0}, 3, v{vM}")
    A(f"v_cmp_eq_u32 s[{M1}:{M1+1}], 1, v{vT0}")
    A(f"v_cmp_eq_u32 s[{M2}:{M2+1}], 2, v{vT0}")
    A(f"v_cmp_eq_u32 s[{M3}:{M3+1}], 3, v{vT0}")
    A(f"v_lshrrev_b32 v{vT0}, 2, v{vM}")
    A(f"v_cmp_eq_u32 s[{MD}:{MD+1}], v{vG}, v{vT0}")

    T()
    A("s_waitcnt vmcnt(24) lgkmcnt(0)")
    A("s_barrier")
    T()
    reads(0, 0, buf[0])
    for c in range(8):
        if c in (2, 4, 6):
            T()
        reads(c, 1, buf[1])
        A("s_waitcnt lgkmcnt(12)")
        mfmas(buf[0])
        A("s_waitcnt lgkmcnt(0)")
        if c < 7:
            out = min(2, 7 - (c + 1)) * 8
            A(f"s_waitcnt vmcnt({out})")
            A("s_barrier")
            if c + 4 < 8:
                dma_chunk(c + 4)
            reads(c + 1, 0, buf[0])
        mfmas(buf[1])

    V.n = mark
    T()
    t = [V() for _ in range(8)]
    vMean, vRstd = V(2, 2), None
    vSt = V()
    for (sm, sq, base) in ((Ssum, Ssq, None), (Hsum, Hsq, 0)):
        A(f"v_cndmask_b32 v{t[0]}, v{sq}, v{sq+1}, s[{M1}:{M1+1}]")
        A(f"v_cndmask_b32 v{t[0]}, v{t[0]}, v{sq+2}, s[{M2}:{M2+1}]")
        A(f"v_cndmask_b32 v{t[0]}, v{t[0]}, v{sq+3}, s[{M3}:{M3+1}]")
        pr = vMean if base is None else t[4]
        if base is not None:
            assert t[4] % 2 == 0 or True
        ln_stats(A, sm, t[0], pr if base is None else t[4], (pr + 1) if base is None else t[5], t[1], t[2])
    vHm = V(2, 2)
    A(f"v_mov_b32 v{vHm}, v{t[4]}")
    A(f"v_mov_b32 v{vHm+1}, v{t[5]}")
    A(f"v_lshlrev_b32 v{vSt}, 3, v{vM}")
    A(f"v_add_u32 v{vSt}, {STATS}, v{vSt}")
    A("s_lshl_b32 s39, s3, 7")
    A(f"v_add_u32 v{t[0]}, s39, v{vSt}")
    A(f"s_mov_b64 exec, s[{MD}:{MD+1}]")
    A(f"ds_write_b64 v{t[0]}, {vr(vMean,2)} offset:128")
    A(f"ds_write_b64 v{vSt}, {vr(vHm,2)}")
    A("s_mov_b64 exec, -1")
    A("s_waitcnt lgkmcnt(0)")
    A("s_barrier")
    T()
    SR = [V(2, 2) for _ in range(5)]
    SV = [V(8, 4) for _ in range(5)]
    vSg = V()
    A(f"v_lshlrev_b32 v{vSg}, 5, v{vG}")
    A(f"v_add_u32 v{vSg}, {STATS}, v{vSg}")
    for f in range(5):
        A(f"ds_read_b64 {vr(SR[f],2)}, v{vSt} offset:{128*f}")
    for f in range(5):
        A(f"ds_read_b128 {vr(SV[f],4)}, v{vSg} offset:{128*f}")
        A(f"ds_read_b128 {vr(SV[f]+4,4)}, v{vSg} offset:{128*f+16}")
    cq, ck = V(4, 4), V(4, 4)
    cv = V()
    A(f"v_lshlrev_b32 v{t[0]}, 2, v{vM}")
    A(f"ds_bpermute_b32 v{cv}, v{t[0]}, v{Dv[0]}")
    for i in range(4):
        A(f"v_mov_b32_dpp v{cq+i}, v{Dq[0]+i} row_newbcast:0 row_mask:0xf bank_mask:0xf")
        A(f"v_mov_b32_dpp v{ck+i}, v{Dk[0]+i} row_newbcast:0 row_mask:0xf bank_mask:0xf")
    A("s_waitcnt lgkmcnt(0)")
    Qp = [None] + [V(2, 2) for _ in range(4)]
    Kp = [V(2, 2) for _ in range(5)]
    VtA, VtB = V(6, 2), V(6, 2)
    Vt = {0: VtA, 1: VtA + 2, 3: VtA + 4, 2: VtB + 2, 4: VtB + 4}

    def ln_rowlane(D, cs, sr, dst):
        for i in range(4):
            A(f"v_fma_f32 v{D+i}, -v{sr}, v{cs+i}, v{D+i}")
        for i in range(4):
            A(f"v_mul_f32 v{D+i}, v{sr+1}, v{D+i}")
        A(f"v_cvt_pk_bf16_f32 v{dst}, v{D}, v{D+1}")
        A(f"v_cvt_pk_bf16_f32 v{dst+1}, v{D+2}, v{D+3}")

    for f in range(5):
        ln_rowlane(Dk[f], ck, SR[f], Kp[f])
    for f in range(1, 5):
        ln_rowlane(Dq[f], cq, SR[f], Qp[f])
    prev = {1: 0, 2: 0, 3: 1, 4: 2}
    Sp = {f: Dq[f] for f in range(1, 5)}
    Ss = {f: Dk[f] for f in range(1, 5)}
    for f in range(1, 5):
        A(f"v_mfma_f32_16x16x16_bf16 {vr(Sp[f],4)}, {vr(Kp[prev[f]],2)}, {vr(Qp[f],2)}, 0")
        A(f"v_mfma_f32_16x16x16_bf16 {vr(Ss[f],4)}, {vr(Kp[f],2)}, {vr(Qp[f],2)}, 0")
    for f in range(5):
        D = Dv[f]
        for i in range(4):
            A(f"v_fma_f32 v{D+i}, -v{SV[f]+2*i}, v{cv}, v{D+i}")
        for i in range(4):
            A(f"v_mul_f32 v{D+i}, v{SV[f]+2*i+1}, v{D+i}")
        A(f"v_cvt_pk_bf16_f32 v{Vt[f]}, v{D}, v{D+1}")
        A(f"v_cvt_pk_bf16_f32 v{Vt[f]+1}, v{D+2}, v{D+3}")
    A(f"v_mov_b32 v{VtB}, v{VtA}")
    A(f"v_mov_b32 v{VtB+1}, v{VtA+1}")
    NEG = V()
    A(f"v_mov_b32 v{NEG}, 0xff800000")
    pm = {1: MPE, 2: MPO, 3: MP9, 4: MP9}
    F = range(1, 5)
    S8 = {f: [Sp[f] + i for i in range(4)] + [Ss[f] + i for i in range(4)] for f in F}
    pk = {f: Dv[f] for f in F}
    mx = {f: V() for f in F}
    m2 = {f: V() for f in F}
    for f in F:
        for i in range(4):
            A(f"v_cvt_pk_bf16_f32 v{pk[f]+i}, v{S8[f][2*i]}, v{S8[f][2*i+1]}")
    for f in F:
        for i in range(4):
            A(f"v_lshlrev_b32 v{S8[f][2*i]}, 16, v{pk[f]+i}")
            A(f"v_and_b32 v{S8[f][2*i+1]}, 0xffff0000, v{pk[f]+i}")
    for f in F:
        for i in range(4):
            A(f"v_cndmask_b32 v{S8[f][i]}, v{NEG}, v{S8[f][i]}, s[{pm[f]+2*i}:{pm[f]+2*i+1}]")
            A(f"v_cndmask_b32 v{S8[f][4+i]}, v{NEG}, v{S8[f][4+i]}, s[{MS+2*i}:{MS+2*i+1}]")
    for f in F:
        s = S8[f]
        A(f"v_max3_f32 v{mx[f]}, v{s[0]}, v{s[1]}, v{s[2]}")
        A(f"v_max3_f32 v{m2[f]}, v{s[3]}, v{s[4]}, v{s[5]}")
        A(f"v_max3_f32 v{mx[f]}, v{mx[f]}, v{s[6]}, v{s[7]}")
        A(f"v_max_f32 v{mx[f]}, v{mx[f]}, v{m2[f]}")

    def xreduce(op):
        for sw in ("v_permlane16_swap_b32", "v_permlane32_swap_b32"):
            for f in F:
                A(f"v_mov_b32 v{m2[f]}, v{mx[f]}")
            for f in F:
                A(f"{sw} v{mx[f]}, v{m2[f]}")
            for f in F:
                A(f"{op} v{mx[f]}, v{mx[f]}, v{m2[f]}")

    xreduce("v_max_f32")
    CL = "0x3eb8aa3b"
    for f in F:
        A(f"v_mul_f32 v{mx[f]}, {CL}, v{mx[f]}")
    A(f"v_mov_b32 v{t[0]}, {CL}")
    for f in F:
        for i in range(8):
            A(f"v_fma_f32 v{S8[f][i]}, v{S8[f][i]}, v{t[0]}, -v{mx[f]}")
    for f in F:
        for i in range(8):
            A(f"v_exp_f32 v{S8[f][i]}, v{S8[f][i]}")
    for f in F:
        s = S8[f]
        A(f"v_add_f32 v{mx[f]}, v{s[0]}, v{s[1]}")
        A(f"v_add_f32 v{m2[f]}, v{s[2]}, v{s[3]}")
        A(f"v_add_f32 v{mx[f]}, v{mx[f]}, v{s[4]}")
        A(f"v_add_f32 v{m2[f]}, v{m2[f]}, v{s[5]}")
        A(f"v_add_f32 v{mx[f]}, v{mx[f]}, v{s[6]}")
        A(f"v_add_f32 v{m2[f]}, v{m2[f]}, v{s[7]}")
        A(f"v_add_f32 v{mx[f]}, v{mx[f]}, v{m2[f]}")
    xreduce("v_add_f32")
    for f in F:
        A(f"v_rcp_f32 v{mx[f]}, v{mx[f]}")
    for f in F:
        for i in range(8):
            A(f"v_mul_f32 v{S8[f][i]}, v{S8[f][i]}, v{mx[f]}")
    for f in F:
        for i in range(4):
            A(f"v_cvt_pk_bf16_f32 v{pk[f]+i}, v{S8[f][2*i]}, v{S8[f][2*i+1]}")
    for f in F:
        a = Vt[f] - 2
        A(f"v_mfma_f32_16x16x32_bf16 {vr(Sp[f],4)}, {vr(a,4)}, {vr(pk[f],4)}, 0")
    T()
    A("s_lshl_b32 s39, s22, 16")
    A("s_lshl_b32 s26, s23, 11")
    A("s_add_u32 s39, s39, s26")
    A("s_lshr_b32 s26, s3, 1")
    A("s_lshl_b32 s26, s26, 10")
    A("s_add_u32 s39, s39, s26")
    A("s_and_b32 s26, s3, 1")
    A("s_lshl_b32 s26, s26, 3")
    A("s_add_u32 s39, s39, s26")
    A(f"v_lshlrev_b32 v{t[0]}, 4, v{vL}")
    for f in F:
        A(f"v_cvt_pk_bf16_f32 v{pk[f]}, v{Sp[f]}, v{Sp[f]+1}")
        A(f"v_cvt_pk_bf16_f32 v{pk[f]+1}, v{Sp[f]+2}, v{Sp[f]+3}")
        A(f"buffer_store_dwordx2 {vr(pk[f],2)}, v{t[0]}, s[16:19], s39 offen")
        if f < 4:
            A("s_add_u32 s39, s39, 16384")
    T.dump(SR[0])
    A(f"{END}:")
    A("s_endpgm")
    return kern_hdr(name) + A.finish(), desc(name, V.hi), 149504


def gemm64_addr(A, V, vL, vG, t):
    vWd = V()
    vB = [V() for _ in range(4)]
    A(f"v_lshrrev_b32 v{t[0]}, 3, v{vL}")
    A(f"v_and_b32 v{t[1]}, 7, v{vL}")
    A(f"v_and_b32 v{t[2]}, 6, v{t[0]}")
    A(f"v_xor_b32 v{t[1]}, v{t[1]}, v{t[2]}")
    A(f"v_lshlrev_b32 v{t[1]}, 4, v{t[1]}")
    A(f"v_lshl_add_u32 v{vWd}, v{t[0]}, 10, v{t[1]}")
    A(f"v_bfe_u32 v{t[0]}, v{vL}, 2, 2")
    A(f"v_lshl_add_u32 v{t[0]}, v{vG}, 2, v{t[0]}")
    A(f"v_bfe_u32 v{t[1]}, v{t[0]}, 1, 2")
    A(f"v_and_b32 v{t[2]}, 3, v{vL}")
    A(f"v_lshlrev_b32 v{t[2]}, 3, v{t[2]}")
    A(f"v_lshl_add_u32 v{t[2]}, v{t[1]}, 5, v{t[2]}")
    A(f"v_lshl_add_u32 v{vB[0]}, v{t[0]}, 7, v{t[2]}")
    for j in range(1, 4):
        A(f"v_xor_b32 v{vB[j]}, {32*j}, v{vB[0]}")
    return vWd, vB


def stageB(name):
    A = Asm()
    END = name + "_end"
    A(f"s_cmp_ge_u32 s2, 256")
    A(f"s_cbranch_scc1 {END}")
    T = TS(A, 1)
    T()
    A("s_load_dwordx2 s[4:5], s[0:1], 0")
    A("s_load_dwordx2 s[6:7], s[0:1], 16")
    A("s_load_dwordx2 s[20:21], s[0:1], 64")
    V = Alloc(1)
    vL, vM, vG = V(), V(), V()
    t = [V() for _ in range(4)]
    A(f"v_lshrrev_b32 v{t[0]}, 6, v0")
    A(f"v_and_b32 v{vL}, 63, v0")
    A(f"v_readfirstlane_b32 s3, v{t[0]}")
    A(f"v_and_b32 v{vM}, 15, v{vL}")
    A(f"v_lshrrev_b32 v{vG}, 4, v{vL}")
    A("s_and_b32 s22, s2, 7")
    A("s_lshr_b32 s23, s2, 3")
    A("s_lshr_b32 s24, s23, 3")
    A("s_lshl_b32 s22, s22, 2")
    A("s_add_u32 s22, s22, s24")
    A("s_and_b32 s23, s23, 7")
    vWd, vB = gemm64_addr(A, V, vL, vG, t)
    vL16 = V()
    A(f"v_lshlrev_b32 v{vL16}, 4, v{vL}")
    vXo = V()
    A(f"v_lshlrev_b32 v{t[0]}, 3, v{vG}")
    A(f"v_lshl_add_u32 v{vXo}, v{vM}, 11, v{t[0]}")
    A("s_lshl_b32 s25, s22, 2")
    A("s_add_u32 s25, s25, s3")
    A("s_lshl_b32 s26, s25, 14")
    A("s_lshl_b32 s27, s3, 13")
    A("s_lshl_b32 s28, s23, 7")
    A("s_add_u32 s27, s27, s28")
    A("s_lshl_b32 s29, s3, 10")
    A("s_lshl_b32 s30, s22, 16")
    A("s_lshr_b32 s31, s3, 1")
    A("s_lshl_b32 s31, s31, 15")
    A("s_add_u32 s30, s30, s31")
    A("s_and_b32 s31, s3, 1")
    A("s_lshl_b32 s31, s31, 10")
    A("s_add_u32 s30, s30, s31")
    A("s_add_u32 s30, s30, s28")
    A("s_waitcnt lgkmcnt(0)")
    srd(A, 8, 4, 5, 0x200000)
    srd(A, 12, 6, 7, 0x80000)
    srd(A, 16, 20, 21, O_SZ, O_OFF)
    srd(A, 32, 20, 21, H_SZ, H_OFF)
    T()
    X = [V(4, 4) for _ in range(16)]
    for p in range(16):
        A(f"s_add_u32 m0, s29, {p*4096}")
        A(f"s_add_u32 s24, s27, {p*32768}")
        A(f"buffer_load_dwordx4 v{vWd}, s[12:15], s24 offen lds")
        if p % 4 == 0 and p:
            A("s_add_u32 s26, s26, 4096")
        off = f" offset:{(p&3)*1024}" if p & 3 else ""
        A(f"buffer_load_dwordx4 {vr(X[p],4)}, v{vL16}, s[16:19], s26 offen{off}")
    RX = [V(2, 2) for _ in range(4)]
    for j in range(4):
        off = f" offset:{j*32}" if j else ""
        A(f"buffer_load_dwordx2 {vr(RX[j],2)}, v{vXo}, s[8:11], s30 offen{off}")
    D = [V(4, 4) for _ in range(4)]
    for b in D:
        for i in range(4):
            A(f"v_mov_b32 v{b+i}, 0")
    buf = [[V(4, 4) for _ in range(8)] for _ in range(2)]

    def reads(pair, B):
        for pp in range(2):
            p = 2 * pair + pp
            for j in range(4):
                for hh in range(2):
                    A(f"ds_read_b64_tr_b16 {vr(B[pp*4+j]+2*hh,2)}, v{vB[j]} offset:{p*4096+hh*2048}")

    def mfmas(pair, B):
        for pp in range(2):
            p = 2 * pair + pp
            for j in range(4):
                A(f"v_mfma_f32_16x16x32_bf16 {vr(D[j],4)}, {vr(B[pp*4+j],4)}, {vr(X[p],4)}, {vr(D[j],4)}")

    T()
    for pair in range(8):
        A(f"s_waitcnt vmcnt({4 + 28 - 4*(pair+1)})")
        A("s_barrier")
        if pair in (0, 2, 4, 6):
            T()
        reads(pair, buf[pair & 1])
        if pair:
            A("s_waitcnt lgkmcnt(16)") if False else None
            mfmas(pair - 1, buf[(pair - 1) & 1])
        A("s_waitcnt lgkmcnt(0)")
    mfmas(7, buf[1])
    A("s_waitcnt vmcnt(0)")
    T()
    A("s_lshl_b32 s26, s25, 14")
    A("s_lshl_b32 s24, s23, 11")
    A("s_add_u32 s26, s26, s24")
    OUT = [V(4, 4) for _ in range(2)]
    for j in range(4):
        d = D[j]
        A(f"v_cvt_pk_bf16_f32 v{t[0]}, v{d}, v{d+1}")
        A(f"v_cvt_pk_bf16_f32 v{t[1]}, v{d+2}, v{d+3}")
        A(f"v_lshlrev_b32 v{d}, 16, v{t[0]}")
        A(f"v_and_b32 v{d+1}, 0xffff0000, v{t[0]}")
        A(f"v_lshlrev_b32 v{d+2}, 16, v{t[1]}")
        A(f"v_and_b32 v{d+3}, 0xffff0000, v{t[1]}")
        A(f"v_lshlrev_b32 v{t[0]}, 16, v{RX[j]}")
        A(f"v_and_b32 v{t[1]}, 0xffff0000, v{RX[j]}")
        A(f"v_lshlrev_b32 v{t[2]}, 16, v{RX[j]+1}")
        A(f"v_and_b32 v{t[3]}, 0xffff0000, v{RX[j]+1}")
        for i in range(4):
            A(f"v_add_f32 v{d+i}, v{d+i}, v{t[i]}")
        o = OUT[j >> 1] + 2 * (j & 1)
        A(f"v_cvt_pk_bf16_f32 v{o}, v{d}, v{d+1}")
        A(f"v_cvt_pk_bf16_f32 v{o+1}, v{d+2}, v{d+3}")
        if j & 1:
            off = " offset:1024" if j >> 1 else ""
            A(f"buffer_store_dwordx4 {vr(OUT[j>>1],4)}, v{vL16}, s[32:35], s26 offen{off}")
    T.dump(RX[0])
    A(f"{END}:")
    A("s_endpgm")
    return kern_hdr(name) + A.finish(), desc(name, V.hi), 65536


def stageC(name):
    A = Asm()
    END = name + "_end"
    A("s_lshr_b32 s23, s2, 3")
    A("s_and_b32 s24, s23, 15")
    A(f"s_cmp_ge_u32 s2, 256")
    A(f"s_cbranch_scc1 {END}")
    A(f"s_cmp_eq_u32 s24, 15")
    A(f"s_cbranch_scc1 {END}")
    T = TS(A, 2)
    T()
    A("s_load_dwordx2 s[6:7], s[0:1], 32")
    A("s_load_dwordx2 s[20:21], s[0:1], 64")
    V = Alloc(1)
    vL, vM, vG = V(), V(), V()
    t = [V() for _ in range(6)]
    A(f"v_lshrrev_b32 v{t[0]}, 6, v0")
    A(f"v_and_b32 v{vL}, 63, v0")
    A(f"v_readfirstlane_b32 s3, v{t[0]}")
    A(f"v_and_b32 v{vM}, 15, v{vL}")
    A(f"v_lshrrev_b32 v{vG}, 4, v{vL}")
    A("s_and_b32 s22, s2, 7")
    A("s_lshr_b32 s23, s23, 4")
    A("s_lshl_b32 s22, s22, 1")
    A("s_add_u32 s22, s22, s23")
    CS = 98304
    vWd = [V() for _ in range(3)]
    for tt in range(3):
        A(f"v_add_u32 v{t[0]}, {64*tt}, v{vL}")
        A(f"v_mul_u32_u24 v{t[1]}, 171, v{t[0]}")
        A(f"v_lshrrev_b32 v{t[1]}, 11, v{t[1]}")
        A(f"v_mul_u32_u24 v{t[2]}, 12, v{t[1]}")
        A(f"v_sub_u32 v{t[2]}, v{t[0]}, v{t[2]}")
        A(f"v_bfe_u32 v{t[3]}, v{t[1]}, 2, 1")
        A(f"v_lshlrev_b32 v{t[3]}, 1, v{t[3]}")
        A(f"v_xor_b32 v{t[2]}, v{t[2]}, v{t[3]}")
        A(f"v_lshlrev_b32 v{t[2]}, 4, v{t[2]}")
        A(f"v_mul_u32_u24 v{t[1]}, 2752, v{t[1]}")
        A(f"v_add_u32 v{vWd[tt]}, v{t[1]}, v{t[2]}")
    vB = [[V(), V()], [V(), V()]]
    A(f"v_bfe_u32 v{t[0]}, v{vL}, 2, 2")
    A(f"v_lshl_add_u32 v{t[0]}, v{vG}, 2, v{t[0]}")
    A(f"v_mul_u32_u24 v{t[0]}, 192, v{t[0]}")
    A(f"v_and_b32 v{t[1]}, 3, v{vL}")
    A(f"v_lshl_add_u32 v{t[0]}, v{t[1]}, 3, v{t[0]}")
    A(f"v_and_b32 v{t[1]}, 1, v{vG}")
    A(f"v_lshlrev_b32 v{t[1]}, 5, v{t[1]}")
    A(f"v_add_u32 v{vB[0][0]}, v{t[0]}, v{t[1]}")
    A(f"v_sub_u32 v{vB[0][1]}, v{t[0]}, v{t[1]}")
    A(f"v_add_u32 v{vB[1][0]}, 49152, v{vB[0][0]}")
    A(f"v_add_u32 v{vB[1][1]}, 49152, v{vB[0][1]}")
    vL16 = V()
    A(f"v_lshlrev_b32 v{vL16}, 4, v{vL}")
    A("s_lshl_b32 s25, s22, 3")
    A("s_lshl_b32 s26, s3, 1")
    A("s_add_u32 s25, s25, s26")
    A("s_lshl_b32 s26, s25, 14")
    A("s_add_u32 s27, s26, 16384")
    A("s_mul_i32 s28, s3, 44032")
    A("s_mul_i32 s29, s24, 192")
    A("s_add_u32 s28, s28, s29")
    A("s_mul_i32 s29, s3, 3072")
    A("s_waitcnt lgkmcnt(0)")
    srd(A, 12, 6, 7, 512 * 2752)
    srd(A, 16, 20, 21, H_SZ, H_OFF)
    srd(A, 32, 20, 21, HID_SZ, HID_OFF)
    vOnes = V(4, 4)
    for i in range(4):
        A(f"v_mov_b32 v{vOnes+i}, 0")
    A(f"v_lshlrev_b32 v{t[0]}, 3, v{vL}")
    A(f"v_add_u32 v{t[0]}, {CS}, v{t[0]}")
    A(f"ds_write_b64 v{t[0]}, {vr(vOnes,2)}")
    T()
    for c in range(8):
        A(f"s_add_u32 s30, s28, {c*64*2752}")
        for tt in range(3):
            A(f"s_add_u32 m0, s29, {c*12288 + tt*1024}")
            A(f"buffer_load_dwordx4 v{vWd[tt]}, s[12:15], s30 offen lds")
        for pp in range(2):
            p = 2 * c + pp
            if p % 4 == 0 and p:
                A("s_add_u32 s26, s26, 4096")
                A("s_add_u32 s27, s27, 4096")
            off = f" offset:{(p&3)*1024}" if p & 3 else ""
            for rf in range(2):
                A(f"buffer_load_dwordx4 {vr((p*2+rf)*4,4,'a')}, v{vL16}, s[16:19], s{26+rf} offen{off}")
    for i in range(4):
        A(f"v_mov_b32 v{vOnes+i}, {ONES}")
    D = [[V(4, 4) for _ in range(6)] for _ in range(2)]
    SS = [V(4, 4) for _ in range(2)]
    SQ = [V(4, 4) for _ in range(2)]
    CSD = [V(4, 4) for _ in range(6)]
    for b in D[0] + D[1] + SS + SQ + CSD:
        for i in range(4):
            A(f"v_mov_b32 v{b+i}, 0")
    buf = [[V(4, 4) for _ in range(6)] for _ in range(2)]
    M1, M2, M3, MD, M0_ = 40, 42, 44, 46, 48
    A(f"v_and_b32 v{t[0]}, 3, v{vM}")
    A(f"v_cmp_eq_u32 s[{M1}:{M1+1}], 1, v{t[0]}")
    A(f"v_cmp_eq_u32 s[{M2}:{M2+1}], 2, v{t[0]}")
    A(f"v_cmp_eq_u32 s[{M3}:{M3+1}], 3, v{t[0]}")
    A(f"v_lshrrev_b32 v{t[0]}, 2, v{vM}")
    A(f"v_cmp_eq_u32 s[{MD}:{MD+1}], v{vG}, v{t[0]}")
    A(f"v_cmp_eq_u32 s[{M0_}:{M0_+1}], 0, v{vM}")

    def reads(p, B):
        half = p >> 3
        for j in range(6):
            for hh in range(2):
                A(f"ds_read_b64_tr_b16 {vr(B[j]+2*hh,2)}, v{vB[half][j&1]} offset:{(p&7)*6144+hh*3072+j*32}")

    def mfmas(p, B):
        for j in range(6):
            for rf in range(2):
                x = vr((p * 2 + rf) * 4, 4, 'a')
                A(f"v_mfma_f32_16x16x32_bf16 {vr(D[rf][j],4)}, {vr(B[j],4)}, {x}, {vr(D[rf][j],4)}")
        for rf in range(2):
            x = vr((p * 2 + rf) * 4, 4, 'a')
            A(f"v_mfma_f32_16x16x32_bf16 {vr(SS[rf],4)}, {vr(vOnes,4)}, {x}, {vr(SS[rf],4)}")
            A(f"v_mfma_f32_16x16x32_bf16 {vr(SQ[rf],4)}, {x}, {x}, {vr(SQ[rf],4)}")
        lab = f"{name}_cs{p}"
        A(f"s_cmp_lg_u32 s3, {p&3}")
        A(f"s_cbranch_scc1 {lab}")
        for j in range(6):
            A(f"v_mfma_f32_16x16x32_bf16 {vr(CSD[j],4)}, {vr(B[j],4)}, {vr(vOnes,4)}, {vr(CSD[j],4)}")
        A(f"{lab}:")

    T()
    A("s_waitcnt vmcnt(49) lgkmcnt(0)")
    A("s_barrier")
    T()
    reads(0, buf[0])
    for c in range(8):
        if c in (2, 4, 6):
            T()
        reads(2 * c + 1, buf[1])
        A("s_waitcnt lgkmcnt(12)")
        mfmas(2 * c, buf[0])
        A("s_waitcnt lgkmcnt(0)")
        if c < 7:
            A(f"s_waitcnt vmcnt({7*(6-c)})")
            A("s_barrier")
            reads(2 * c + 2, buf[0])
        mfmas(2 * c + 1, buf[1])
    A("s_nop 7")
    T()
    A(f"v_lshlrev_b32 v{t[0]}, 4, v{vG}")
    A(f"v_add_u32 v{t[0]}, {CS}, v{t[0]}")
    A(f"s_mov_b64 exec, s[{M0_}:{M0_+1}]")
    for j in range(6):
        for i in range(4):
            A(f"ds_add_f32 v{t[0]}, v{CSD[j]+i} offset:{64*j+4*i}")
    A("s_mov_b64 exec, -1")
    MR = [V(2, 2) for _ in range(2)]
    z = V()
    for rf in range(2):
        sq = SQ[rf]
        A(f"v_cndmask_b32 v{t[1]}, v{sq}, v{sq+1}, s[{M1}:{M1+1}]")
        A(f"v_cndmask_b32 v{t[1]}, v{t[1]}, v{sq+2}, s[{M2}:{M2+1}]")
        A(f"v_cndmask_b32 v{t[1]}, v{t[1]}, v{sq+3}, s[{M3}:{M3+1}]")
        A(f"v_cndmask_b32 v{t[1]}, 0, v{t[1]}, s[{MD}:{MD+1}]")
        for sw in ("v_permlane16_swap_b32", "v_permlane32_swap_b32"):
            A(f"v_mov_b32 v{z}, v{t[1]}")
            A(f"{sw} v{t[1]}, v{z}")
            A(f"v_add_f32 v{t[1]}, v{t[1]}, v{z}")
        ln_stats(A, SS[rf], t[1], MR[rf], MR[rf] + 1, t[2], t[3])
    A("s_waitcnt lgkmcnt(0)")
    A("s_barrier")
    T()
    for j in range(6):
        A(f"ds_read_b128 {vr(CSD[j],4)}, v{t[0]} offset:{64*j}")
    A("s_mul_i32 s26, s25, 44032")
    A("s_mul_i32 s27, s24, 3072")
    A("s_add_u32 s26, s26, s27")
    A("s_add_u32 s27, s26, 44032")
    A("s_waitcnt lgkmcnt(0)")
    OUT = [V(4, 4) for _ in range(2)]
    for jj in range(3):
        for rf in range(2):
            for jo in range(2):
                j = 2 * jj + jo
                d = D[rf][j]
                for i in range(4):
                    A(f"v_fma_f32 v{d+i}, -v{MR[rf]}, v{CSD[j]+i}, v{d+i}")
                for i in range(4):
                    A(f"v_mul_f32 v{d+i}, v{MR[rf]+1}, v{d+i}")
                for i in range(4):
                    A(f"v_max_f32 v{d+i}, 0, v{d+i}")
                A(f"v_cvt_pk_bf16_f32 v{OUT[rf]+2*jo}, v{d}, v{d+1}")
                A(f"v_cvt_pk_bf16_f32 v{OUT[rf]+2*jo+1}, v{d+2}, v{d+3}")
            off = f" offset:{jj*1024}" if jj else ""
            A(f"buffer_store_dwordx4 {vr(OUT[rf],4)}, v{vL16}, s[32:35], s{26+rf} offen{off}")
        if jj == 0:
            A("s_cmp_eq_u32 s24, 14")
            A(f"s_cbranch_scc1 {END}")
    T.dump(MR[0])
    A(f"{END}:")
    A("s_endpgm")
    return kern_hdr(name) + A.finish(), desc(name, V.hi, 128), 98304 + 512


def stageD(name):
    A = Asm()
    END = name + "_end"
    A(f"s_cmp_ge_u32 s2, 256")
    A(f"s_cbranch_scc1 {END}")
    T = TS(A, 3)
    T()
    A("s_load_dwordx4 s[4:7], s[0:1], 40")
    A("s_load_dwordx2 s[20:21], s[0:1], 64")
    V = Alloc(1)
    vL, vM, vG = V(), V(), V()
    t = [V() for _ in range(4)]
    A(f"v_lshrrev_b32 v{t[0]}, 6, v0")
    A(f"v_and_b32 v{vL}, 63, v0")
    A(f"v_readfirstlane_b32 s3, v{t[0]}")
    A(f"v_and_b32 v{vM}, 15, v{vL}")
    A(f"v_lshrrev_b32 v{vG}, 4, v{vL}")
    A("s_and_b32 s22, s2, 7")
    A("s_lshr_b32 s23, s2, 3")
    A("s_lshr_b32 s24, s23, 3")
    A("s_lshl_b32 s22, s22, 2")
    A("s_add_u32 s22, s22, s24")
    A("s_and_b32 s23, s23, 7")
    vWd, vB0 = gemm64_addr(A, V, vL, vG, t)
    vB = [vB0, [V() for _ in range(4)], [V() for _ in range(4)]]
    for h in range(1, 3):
        for j in range(4):
            A(f"v_add_u32 v{vB[h][j]}, {65536*h}, v{vB0[j]}")
    vL16 = V()
    A(f"v_lshlrev_b32 v{vL16}, 4, v{vL}")
    A("s_lshl_b32 s25, s22, 2")
    A("s_add_u32 s25, s25, s3")
    A("s_mul_i32 s26, s25, 44032")
    A("s_lshl_b32 s27, s3, 13")
    A("s_lshl_b32 s28, s23, 7")
    A("s_add_u32 s27, s27, s28")
    A("s_lshl_b32 s29, s3, 10")
    A("s_lshl_b32 s30, s25, 14")
    A("s_lshl_b32 s31, s23, 11")
    A("s_add_u32 s30, s30, s31")
    A("s_waitcnt lgkmcnt(0)")
    srd(A, 12, 4, 5, 1376 * 1024)
    srd(A, 8, 6, 7, 0x200000)
    srd(A, 16, 20, 21, HID_SZ, HID_OFF)
    srd(A, 32, 20, 21, H_SZ, H_OFF)
    NS, AHEAD = 40, 28

    def loads(p):
        A(f"s_add_u32 m0, s29, {(p%NS)*4096}")
        A(f"s_add_u32 s24, s27, {p*32768}")
        A(f"buffer_load_dwordx4 v{vWd}, s[12:15], s24 offen lds")
        if p % 4 == 0 and p:
            A("s_add_u32 s26, s26, 4096")
        off = f" offset:{(p&3)*1024}" if p & 3 else ""
        A(f"buffer_load_dwordx4 {vr(4*p,4,'a')}, v{vL16}, s[16:19], s26 offen{off}")

    RH = [V(4, 4) for _ in range(2)]
    T()
    A(f"buffer_load_dwordx4 {vr(RH[0],4)}, v{vL16}, s[32:35], s30 offen")
    A(f"buffer_load_dwordx4 {vr(RH[1],4)}, v{vL16}, s[32:35], s30 offen offset:1024")
    for p in range(AHEAD):
        loads(p)
    D = [V(4, 4) for _ in range(4)]
    for b in D:
        for i in range(4):
            A(f"v_mov_b32 v{b+i}, 0")
    buf = [[V(4, 4) for _ in range(8)] for _ in range(2)]
    groups = [(p, min(p + 2, 43)) for p in range(0, 43, 2)]

    def reads(gr, B):
        for p in range(*gr):
            s = p % NS
            pp = p - gr[0]
            for j in range(4):
                for hh in range(2):
                    A(f"ds_read_b64_tr_b16 {vr(B[pp*4+j]+2*hh,2)}, v{vB[s>>4][j]} offset:{(s&15)*4096+hh*2048}")

    def mfmas(gr, B):
        for p in range(*gr):
            pp = p - gr[0]
            for j in range(4):
                A(f"v_mfma_f32_16x16x32_bf16 {vr(D[j],4)}, {vr(B[pp*4+j],4)}, {vr(4*p,4,'a')}, {vr(D[j],4)}")

    issued = AHEAD
    T()
    for gi, gr in enumerate(groups):
        A(f"s_waitcnt vmcnt({2*(issued - gr[1])})")
        A("s_barrier")
        if gi in (0, 4, 8, 12, 16, 20):
            T()
        for p in range(issued, min(issued + 2, 43)):
            loads(p)
        issued = min(issued + 2, 43)
        reads(gr, buf[gi & 1])
        if gi:
            mfmas(groups[gi - 1], buf[(gi - 1) & 1])
        A("s_waitcnt lgkmcnt(0)")
    mfmas(groups[-1], buf[(len(groups) - 1) & 1])
    T()
    A("s_lshl_b32 s30, s22, 16")
    A("s_lshr_b32 s31, s3, 1")
    A("s_lshl_b32 s31, s31, 15")
    A("s_add_u32 s30, s30, s31")
    A("s_and_b32 s31, s3, 1")
    A("s_lshl_b32 s31, s31, 10")
    A("s_add_u32 s30, s30, s31")
    A("s_add_u32 s30, s30, s28")
    vOo = V()
    A(f"v_and_b32 v{t[0]}, 1, v{vG}")
    A(f"v_lshlrev_b32 v{t[0]}, 5, v{t[0]}")
    A(f"v_lshrrev_b32 v{t[1]}, 1, v{vG}")
    A(f"v_lshl_add_u32 v{t[0]}, v{t[1]}, 4, v{t[0]}")
    A(f"v_lshl_add_u32 v{vOo}, v{vM}, 11, v{t[0]}")
    OUT = [V(4, 4) for _ in range(2)]
    for j in range(4):
        d = D[j]
        rx = RH[j >> 1] + 2 * (j & 1)
        A(f"v_cvt_pk_bf16_f32 v{t[0]}, v{d}, v{d+1}")
        A(f"v_cvt_pk_bf16_f32 v{t[1]}, v{d+2}, v{d+3}")
        A(f"v_lshlrev_b32 v{d}, 16, v{t[0]}")
        A(f"v_and_b32 v{d+1}, 0xffff0000, v{t[0]}")
        A(f"v_lshlrev_b32 v{d+2}, 16, v{t[1]}")
        A(f"v_and_b32 v{d+3}, 0xffff0000, v{t[1]}")
        A(f"v_lshlrev_b32 v{t[0]}, 16, v{rx}")
        A(f"v_and_b32 v{t[1]}, 0xffff0000, v{rx}")
        A(f"v_lshlrev_b32 v{t[2]}, 16, v{rx+1}")
        A(f"v_and_b32 v{t[3]}, 0xffff0000, v{rx+1}")
        for i in range(4):
            A(f"v_add_f32 v{d+i}, v{d+i}, v{t[i]}")
        o = OUT[j >> 1]
        if j & 1 == 0:
            A(f"v_cvt_pk_bf16_f32 v{o}, v{d}, v{d+1}")
            A(f"v_cvt_pk_bf16_f32 v{o+1}, v{d+2}, v{d+3}")
        else:
            A(f"v_cvt_pk_bf16_f32 v{o+2}, v{d}, v{d+1}")
            A(f"v_cvt_pk_bf16_f32 v{o+3}, v{d+2}, v{d+3}")
            A(f"v_permlane16_swap_b32 v{o}, v{o+2}")
            A(f"v_permlane16_swap_b32 v{o+1}, v{o+3}")
            off = " offset:64" if j >> 1 else ""
            A(f"buffer_store_dwordx4 {vr(o,4)}, v{vOo}, s[8:11], s30 offen{off}")
    T.dump(RH[0])
    A(f"{END}:")
    A("s_endpgm")
    return kern_hdr(name) + A.finish(), desc(name, V.hi, 172), 163840


def build(stages="ABCD", extra_empty=0):
    fn = dict(A=stageA, B=stageB, C=stageC, D=stageD)
    ks = []
    for s in stages:
        nm = f"st{s}_kernel"
        ks.append((nm,) + fn[s](nm))
    for i in range(extra_empty):
        nm = f"e{i}_kernel"
        ks.append((nm, kern_hdr(nm) + "  s_endpgm\n", desc(nm, 8), 0))
    out = ""
    for nm, code, d, lds in ks:
        out += f"; @launch kernel={nm} grid=(256,1,1) block=(256,1,1) lds={lds}\n"
    out += '.amdgcn_target "amdgcn-amd-amdhsa--gfx950"\n.text\n'
    for nm, code, d, lds in ks:
        out += code
    out += '.section .rodata,"a"\n'
    for nm, code, d, lds in ks:
        out += d
    return out


if __name__ == "__main__":
    open("sequential_preLN__sliding_local_dilated__dense_activation_relu__prompt.s", "w").write(build())
    INSTR = True
    open("k4t.s", "w").write(build())
```

```python
import sys
sys.path.insert(0, "work")
from asmlib import *

KNAME = "sequential_preLN__sliding_local_dilated__dense_activation_relu__prompt_kernel"
O_OFF = 0
H_OFF = 0x200000
HID_OFF = 0x400000
FLAG_OFF = 0x980000
TS_OFF = 0x1000000
WS_SZ = 0x10000000
ONES = "0x3f803f80"
LDS_TOTAL = 163840
MISC = 161792
STATS = MISC
BCAST = MISC + 896
DUMMY = MISC + 1024
SPIN = 20000

SX, SWQ, SWO, SW1, SW2, SOUT, SDBG, SWS = 8, 12, 16, 20, 24, 28, 32, 36


def sr(b):
    return f"s[{b}:{b+3}]"


def srd(A, b, lo, hi, size):
    A(f"s_mov_b32 s{b}, s{lo}")
    A(f"s_and_b32 s{b+1}, s{hi}, 0xffff")
    A(f"s_mov_b32 s{b+2}, {size}")
    A(f"s_mov_b32 s{b+3}, 0x20000")


def rnd_bf16(A, dst, src):
    A(f"v_cvt_pk_bf16_f32 v{dst}, v{src}, v{src}")
    A(f"v_lshlrev_b32 v{dst}, 16, v{dst}")


def ln_stats(A, vsum, vsq, vmean, vrstd, t0, t1):
    A(f"v_mul_f32 v{t0}, 0x3b000000, v{vsum}")
    A(f"v_mul_f32 v{t1}, 0x3b000000, v{vsq}")
    A(f"v_fma_f32 v{t1}, -v{t0}, v{t0}, v{t1}")
    A(f"v_max_f32 v{t1}, 0, v{t1}")
    rnd_bf16(A, vmean, t0)
    rnd_bf16(A, t1, t1)
    A(f"v_add_f32 v{t1}, 0x3727c5ac, v{t1}")
    rnd_bf16(A, t1, t1)
    A(f"v_sqrt_f32 v{t1}, v{t1}")
    rnd_bf16(A, t1, t1)
    A(f"v_rcp_f32 v{vrstd}, v{t1}")


class Blk:
    def __init__(self, kind, idx, size, need, dep=None, nl=1):
        self.kind, self.idx, self.size, self.need, self.dep, self.nl = kind, idx, size, need, dep, nl
        self.addr = None
        self.slot = None

    def __repr__(self):
        return f"{self.kind}{self.idx}@{self.addr//1024 if self.addr is not None else None}"


BGRP = [4, 4, 4, 2, 2]
DGRP = [4] * 10 + [2, 1]
RESERVE = dict(A=0, B=48 * 1024, C=40 * 1024, D=48 * 1024)


def make_schedule(verbose=False):
    steps = [f"a{i}" for i in range(8)] + ["ae"] + [f"b{i}" for i in range(len(BGRP))] + ["be"] + \
            [f"c{i}" for i in range(8)] + ["ce"] + [f"d{i}" for i in range(len(DGRP))]
    si = {s: i for i, s in enumerate(steps)}

    def grp_of(G, p):
        acc = 0
        for i, g in enumerate(G):
            acc += g
            if p < acc:
                return i
    blks = []
    halo = Blk("HA", 0, 16384, si["a0"], nl=4)
    halo.last = si["a7"]
    blks.append(halo)
    for c in range(8):
        blks.append(Blk("AC", c, 32768, si[f"a{c}"], nl=8))
    for p in range(16):
        blks.append(Blk("BW", p, 4096, si[f"b{grp_of(BGRP,p)}"]))
        blks.append(Blk("BO", p, 4096, si[f"b{grp_of(BGRP,p)}"], dep="A"))
    for c in range(8):
        blks.append(Blk("CW", c, 12288, si[f"c{c}"], nl=3))
        for pp in range(2):
            blks.append(Blk("CH", 2 * c + pp, 8192, si[f"c{c}"], dep="B", nl=2))
    for p in range(43):
        blks.append(Blk("DW", p, 4096, si[f"d{grp_of(DGRP,p)}"]))
        blks.append(Blk("DH", p, 4096, si[f"d{grp_of(DGRP,p)}"], dep="C"))
    for b in blks:
        if not hasattr(b, "last"):
            b.last = b.need
    PG = 2048
    NP = MISC // PG
    free = [True] * NP

    def alloc(size, high):
        n = size // PG
        rng = range(NP - n, -1, -1) if high else range(0, NP - n + 1)
        for s in rng:
            if all(free[s:s + n]):
                for i in range(s, s + n):
                    free[i] = False
                return s * PG
        return None

    def release(b):
        for i in range(b.addr // PG, (b.addr + b.size) // PG):
            free[i] = True
    pollslot = {"A": si["ae"], "B": si["be"], "C": si["ce"]}
    polled = set()
    pending = sorted(blks, key=lambda b: (b.need, 0 if b.dep else 1))
    prog = []
    live = []
    for slot in range(-1, len(steps)):
        ops = []
        for b in list(live):
            if b.last < slot:
                release(b)
                live.remove(b)

        def issue_pass():
            stop_indep = False
            for b in list(pending):
                if b.dep and b.dep not in polled:
                    continue
                if not b.dep and stop_indep:
                    continue
                blocked = [x for x in pending if x.dep and x.dep not in polled and x.need <= b.need]
                if blocked and not b.dep:
                    d = blocked[0].dep
                    nxt = {"A": "B", "B": "C", "C": "D"}[d]
                    res = min(RESERVE[nxt], sum(x.size for x in blocked if x.dep == d))
                    proj = sum(free) * PG - b.size + sum(x.size for x in live if x.last < pollslot[d])
                    proj -= sum(x.size for x in pending if x is not b and x.need < b.need and x.last >= pollslot[d] and not (x.dep == d))
                    if proj < res:
                        stop_indep = True
                        continue
                elif not b.dep:
                    early = sum(x.size for x in pending if x.dep and x.need < b.need)
                    if early and sum(free) * PG - b.size < min(early, 16384):
                        stop_indep = True
                        continue
                a = alloc(b.size, high=(b.dep is None and b.kind not in ("HA", "AC")))
                if a is None:
                    if b.dep:
                        break
                    stop_indep = True
                    continue
                b.addr, b.slot = a, slot
                pending.remove(b)
                live.append(b)
                ops.append(("ld", b))
        issue_pass()
        for d, ps in pollslot.items():
            if ps == slot:
                ops.append(("poll", d))
                polled.add(d)
                issue_pass()
        prog.append(ops)
    assert not pending, pending
    for b in blks:
        assert b.slot < b.need, (b, b.slot, b.need)
    if verbose:
        for slot, ops in zip(range(-1, len(steps)), prog):
            print(steps[slot] if slot >= 0 else "pre", [o[1] for o in ops])
    B = {(b.kind, b.idx): b for b in blks}
    return steps, prog, B


class TS:
    def __init__(self, A, vreg, on):
        self.A, self.v, self.on, self.n = A, vreg, on, 0
        self.names = []

    def __call__(self, name=""):
        if not self.on:
            return
        A = self.A
        A("s_memtime s[98:99]")
        A("s_waitcnt lgkmcnt(0)")
        A(f"v_writelane_b32 v{self.v}, s98, {self.n}")
        self.names.append(name)
        self.n += 1
        assert self.n <= 64

    def dump(self, vt):
        if not self.on:
            return
        A = self.A
        self("end")
        A("s_lshl_b32 s98, s2, 3")
        A("s_add_u32 s98, s98, s3")
        A("s_lshl_b32 s98, s98, 8")
        A(f"s_add_u32 s98, s98, {TS_OFF}")
        A(f"v_and_b32 v{vt}, 63, v0")
        A(f"v_lshlrev_b32 v{vt}, 2, v{vt}")
        A(f"buffer_store_dword v{self.v}, v{vt}, {sr(SWS)}, s98 offen")


class Pat:
    def __init__(self, A, V, v0, wins=(0, 1, 2)):
        self.b = {0: v0}
        for wdw in wins:
            if wdw:
                self.b[wdw] = V()
                A(f"v_add_u32 v{self.b[wdw]}, {65536*wdw}, v{v0}")

    def __call__(self, addr):
        return f"v{self.b[addr >> 16]} offset:{addr & 0xffff}"


def interleave(A, mf, rd, bar):
    nm, nr = len(mf), len(rd)
    per = max(1, -(-nr // max(1, nm - 1)))
    start = max(0, nm - 1 - -(-nr // per)) if bar else 0
    if bar and start > 6:
        start = 6
    ri = 0
    for i, m in enumerate(mf):
        if i == start and bar:
            A("s_barrier")
        A(m)
        if i >= start:
            for _ in range(per):
                if ri < nr:
                    A(rd[ri])
                    ri += 1
    while ri < nr:
        A(rd[ri])
        ri += 1


def run_units(A, units, T=None, tn=""):
    A("s_barrier")
    if T:
        T(tn + "0")
    for r in units[0][1](0):
        A(r)
    for u in range(len(units)):
        A("s_waitcnt lgkmcnt(0)")
        mf = units[u][2](u & 1)
        if u + 1 < len(units):
            interleave(A, mf, units[u + 1][1]((u + 1) & 1), units[u + 1][0])
        else:
            yield mf


def mfma(D, a, b, c=None):
    return f"v_mfma_f32_16x16x32_bf16 {vr(D,4)}, {vr(a,4)}, {vr(b,4)}, {vr(D,4) if c is None else c}"


def build(instr=False, verbose=False):
    steps, prog, BL = make_schedule(verbose)
    A = Asm()
    A("s_cmp_ge_u32 s2, 256")
    A("s_cbranch_scc1 L_END")
    A("s_load_dwordx16 s[40:55], s[0:1], 0")
    A("s_load_dwordx2 s[56:57], s[0:1], 64")
    V = Alloc(1)
    vTS = V()
    vL, vM, vG, vL16 = V(), V(), V(), V()
    t = [V() for _ in range(8)]
    A(f"v_lshrrev_b32 v{t[0]}, 6, v0")
    A(f"v_and_b32 v{vL}, 63, v0")
    A(f"v_readfirstlane_b32 s3, v{t[0]}")
    A(f"v_and_b32 v{vM}, 15, v{vL}")
    A(f"v_lshrrev_b32 v{vG}, 4, v{vL}")
    A(f"v_lshlrev_b32 v{vL16}, 4, v{vL}")
    A("s_getreg_b32 s5, hwreg(HW_REG_XCC_ID)")
    A("s_and_b32 s5, s5, 7")
    A("s_and_b32 s4, s3, 3")
    Tc = TS(A, vTS, instr)
    Tp = TS(A, vTS, instr)
    Tc("start")
    Tp.names.append("start")
    Tp.n = Tc.n
    A("s_waitcnt lgkmcnt(0)")
    srd(A, SX, 40, 41, 0x200000)
    srd(A, SWQ, 42, 43, 0x180000)
    srd(A, SWO, 44, 45, 0x80000)
    srd(A, SW1, 48, 49, 512 * 2752)
    srd(A, SW2, 50, 51, 1376 * 1024)
    srd(A, SOUT, 52, 53, 0x200000)
    srd(A, SDBG, 54, 55, 256)
    srd(A, SWS, 56, 57, WS_SZ)
    A("s_cmp_ge_u32 s3, 4")
    A("s_cbranch_scc1 L_PROD")
    mark0 = V.n

    def get_slot():
        A(f"v_mov_b32 v{t[0]}, {BCAST}")
        A(f"ds_read_b32 v{t[0]}, v{t[0]}")
        A("s_waitcnt lgkmcnt(0)")
        A(f"v_readfirstlane_b32 s6, v{t[0]}")
        A("s_cmp_ge_u32 s6, 32")
        A("s_cbranch_scc1 L_END")
        A("s_lshr_b32 s40, s6, 3")
        A("s_lshl_b32 s41, s5, 2")
        A("s_add_u32 s40, s40, s41")
        A("s_and_b32 s41, s6, 7")
        A("s_lshr_b32 s42, s40, 1")
        A("s_and_b32 s43, s6, 15")
    RT_, CT_, RRT_, C15_ = 40, 41, 42, 43

    def flag_base(dst, stage, grp_s):
        A(f"s_mul_i32 s{dst}, s5, 12")
        A(f"s_add_u32 s{dst}, s{dst}, s{grp_s}")
        A(f"s_lshl_b32 s{dst}, s{dst}, 8")
        A(f"s_add_u32 s{dst}, s{dst}, {FLAG_OFF + stage*1024}")

    T = Tc
    A("s_cmp_lg_u32 s3, 0")
    A("s_cbranch_scc1 L_C_NOTICKET")
    A("s_lshl_b32 s58, s5, 2")
    A(f"v_mov_b32 v{t[0]}, 1")
    A(f"v_mov_b32 v{t[1]}, 0")
    A("s_mov_b64 exec, 1")
    A(f"buffer_atomic_add v{t[0]}, v{t[1]}, {sr(SDBG)}, s58 offen sc0")
    A("s_memrealtime s[60:61]")
    A("s_waitcnt vmcnt(0) lgkmcnt(0)")
    A(f"v_mov_b32 v{t[2]}, {BCAST}")
    A(f"ds_write_b32 v{t[2]}, v{t[0]}")
    A(f"v_readfirstlane_b32 s59, v{t[0]}")
    A("s_cmp_lg_u32 s59, 0")
    A("s_cbranch_scc1 L_C_NONONCE")
    A("s_or_b32 s60, s60, 1")
    A(f"v_mov_b32 v{t[0]}, s60")
    A(f"buffer_store_dword v{t[0]}, v{t[1]}, {sr(SDBG)}, s58 offen offset:128")
    A("L_C_NONONCE:")
    A("s_mov_b64 exec, -1")
    A("L_C_NOTICKET:")
    vOnes = V(4, 4)
    for i in range(4):
        A(f"v_mov_b32 v{vOnes+i}, {ONES}")
    assert BL[("HA", 0)].addr == 0
    A(f"ds_write_b128 v{vL16}, {vr(vOnes,4)}")
    RH = [V(4, 4) for _ in range(2)]
    RX = [V(2, 2) for _ in range(4)]
    vNon = V()
    markS = V.n
    A("s_lshl_b32 s58, s4, 11")
    x0, x1, xs0, xs1, w0 = V(), V(), V(), V(), V()
    A(f"v_lshrrev_b32 v{t[0]}, 1, v{vM}")
    A(f"v_xor_b32 v{t[0]}, v{vG}, v{t[0]}")
    A(f"v_lshlrev_b32 v{t[0]}, 4, v{t[0]}")
    A(f"v_lshl_add_u32 v{x0}, v{vM}, 7, v{t[0]}")
    A(f"v_xor_b32 v{x1}, 64, v{x0}")
    A(f"v_add_u32 v{xs0}, s58, v{x0}")
    A(f"v_add_u32 v{xs1}, s58, v{x1}")
    A(f"v_bfe_u32 v{t[0]}, v{vL}, 2, 2")
    A(f"v_and_b32 v{t[1]}, 3, v{vL}")
    A(f"v_lshrrev_b32 v{t[2]}, 1, v{t[0]}")
    A(f"v_and_b32 v{t[3]}, 1, v{vG}")
    A(f"v_lshl_add_u32 v{t[2]}, v{t[3]}, 1, v{t[2]}")
    A(f"v_xor_b32 v{t[2]}, s4, v{t[2]}")
    A(f"v_lshlrev_b32 v{t[2]}, 5, v{t[2]}")
    A(f"v_lshl_add_u32 v{t[2]}, v{t[1]}, 3, v{t[2]}")
    A(f"v_lshl_add_u32 v{t[0]}, v{vG}, 3, v{t[0]}")
    A(f"v_lshl_add_u32 v{w0}, v{t[0]}, 7, v{t[2]}")
    pXr = [Pat(A, V, x0), Pat(A, V, x1)]
    pXs = [Pat(A, V, xs0), Pat(A, V, xs1)]
    pW = Pat(A, V, w0)
    vHr = [V() for _ in range(4)]
    A(f"v_xor_b32 v{t[0]}, v{vG}, v{vM}")
    A(f"v_lshlrev_b32 v{t[0]}, 4, v{t[0]}")
    A(f"v_lshl_add_u32 v{vHr[0]}, v{vM}, 10, v{t[0]}")
    for i in range(1, 4):
        A(f"v_xor_b32 v{vHr[i]}, {64*i}, v{vHr[0]}")
    Dq = [V(4, 4) for _ in range(5)]
    Dk = [V(4, 4) for _ in range(5)]
    Dv = [V(4, 4) for _ in range(5)]
    Ssum, Ssq, Hsum, Hsq = [V(4, 4) for _ in range(4)]
    for b in Dq + Dk + Dv + [Ssum, Ssq, Hsum, Hsq]:
        for i in range(4):
            A(f"v_mov_b32 v{b+i}, 0")
    vD = V()
    mark = V.n
    buf = [dict(X=[V(4, 4) for _ in range(5)], XS=V(4, 4), W=[V(4, 4) for _ in range(3)]) for _ in range(2)]
    A(f"v_lshlrev_b32 v{t[0]}, 2, v{vG}")
    A(f"v_sub_u32 v{vD}, v{t[0]}, v{vM}")
    MS, MP9, MPE, MPO = 60, 68, 76, 84
    M1, M2, M3, MD = 44, 46, 48, 50
    for r_ in range(4):
        A(f"v_add_u32 v{t[1]}, {r_+7}, v{vD}")
        A(f"v_cmp_gt_u32 s[{MS+2*r_}:{MS+2*r_+1}], 8, v{t[1]}")
        A(f"v_cmp_le_i32 s[{MP9+2*r_}:{MP9+2*r_+1}], {9-r_}, v{vD}")
        A(f"v_cmp_le_i32 s[{MPE+2*r_}:{MPE+2*r_+1}], {1-r_}, v{vD}")
    A(f"v_cmp_gt_u32 s[92:93], 2, v{vG}")
    A(f"v_and_b32 v{t[0]}, 3, v{vM}")
    A(f"v_cmp_eq_u32 s[{M1}:{M1+1}], 1, v{t[0]}")
    A(f"v_cmp_eq_u32 s[{M2}:{M2+1}], 2, v{t[0]}")
    A(f"v_cmp_eq_u32 s[{M3}:{M3+1}], 3, v{t[0]}")
    A(f"v_lshrrev_b32 v{t[0]}, 2, v{vM}")
    A(f"v_cmp_eq_u32 s[{MD}:{MD+1}], v{vG}, v{t[0]}")
    A("s_waitcnt lgkmcnt(0)")
    A("s_barrier")
    get_slot()
    T("slot")
    A(f"s_cmp_eq_u32 s{RT_}, 0")
    A("s_cselect_b32 s94, 0, -1")
    A("s_mov_b32 s95, s94")
    A("s_and_b64 s[92:93], s[92:93], s[94:95]")
    for r_ in range(4):
        A(f"s_and_b64 s[{MPE+2*r_}:{MPE+2*r_+1}], s[{MPE+2*r_}:{MPE+2*r_+1}], s[92:93]")
        A(f"s_and_b64 s[{MPO+2*r_}:{MPO+2*r_+1}], s[{MP9+2*r_}:{MP9+2*r_+1}], s[94:95]")

    def a_reads(n):
        c, pp = n >> 1, n & 1
        base = BL[("AC", c)].addr

        def f(bi):
            B = buf[bi]
            r = []
            for sg in range(3):
                for hh in range(2):
                    r.append(f"ds_read_b64_tr_b16 {vr(B['W'][sg]+2*hh,2)}, {pW(base + 8192 + sg*8192 + pp*4096 + hh*512)}")
            r.append(f"ds_read_b128 {vr(B['X'][0],4)}, v{vHr[n&3]} offset:{(n>>2)*256}")
            for q in range(4):
                r.append(f"ds_read_b128 {vr(B['X'][1+q],4)}, {pXr[pp](base + q*2048)}")
            r.append(f"ds_read_b128 {vr(B['XS'],4)}, {pXs[pp](base)}")
            return r
        return f

    def a_mf(bi):
        B = buf[bi]
        m = []
        for f in range(5):
            m.append(mfma(Dq[f], B['W'][0], B['X'][f]))
            m.append(mfma(Dk[f], B['W'][1], B['X'][f]))
            m.append(mfma(Dv[f], B['X'][f], B['W'][2]))
        m.append(mfma(Hsum, vOnes, B['X'][0]))
        m.append(mfma(Hsq, B['X'][0], B['X'][0]))
        m.append(mfma(Ssum, vOnes, B['XS']))
        m.append(mfma(Ssq, B['XS'], B['XS']))
        return m

    for mf in run_units(A, [(n % 2 == 0, a_reads(n), a_mf) for n in range(16)], T, "a"):
        A(f"v_lshlrev_b32 v{t[0]}, 3, v{vG}")
        A(f"v_lshl_add_u32 v{t[1]}, v{vM}, 11, v{t[0]}")
        A(f"s_lshl_b32 s52, s{RT_}, 16")
        A("s_lshr_b32 s53, s4, 1")
        A("s_lshl_b32 s53, s53, 15")
        A("s_add_u32 s52, s52, s53")
        A(f"s_lshl_b32 s53, s{CT_}, 7")
        A("s_add_u32 s52, s52, s53")
        A("s_and_b32 s53, s4, 1")
        A("s_lshl_b32 s53, s53, 6")
        A("s_add_u32 s52, s52, s53")
        for e in range(2):
            for jo in range(2):
                A(f"buffer_load_dwordx2 {vr(RX[2*e+jo],2)}, v{t[1]}, {sr(SX)}, s52 offen offset:{e*1024+jo*32}")
        A("s_lshl_b32 s53, s5, 2")
        A(f"v_mov_b32 v{t[0]}, 0")
        A(f"buffer_load_dword v{vNon}, v{t[0]}, {sr(SDBG)}, s53 offen offset:128 sc1")
        for m in mf:
            A(m)
    T("a_mf_done")
    V.n = mark
    tt = [V() for _ in range(8)]
    vMean = V(2, 2)
    vHm = V(2, 2)
    vSt = V()
    for (sm, sq, dst) in ((Ssum, Ssq, vMean), (Hsum, Hsq, vHm)):
        A(f"v_cndmask_b32 v{tt[0]}, v{sq}, v{sq+1}, s[{M1}:{M1+1}]")
        A(f"v_cndmask_b32 v{tt[0]}, v{tt[0]}, v{sq+2}, s[{M2}:{M2+1}]")
        A(f"v_cndmask_b32 v{tt[0]}, v{tt[0]}, v{sq+3}, s[{M3}:{M3+1}]")
        ln_stats(A, sm, tt[0], dst, dst + 1, tt[1], tt[2])
    A(f"v_lshlrev_b32 v{vSt}, 3, v{vM}")
    A(f"v_add_u32 v{vSt}, {STATS}, v{vSt}")
    A("s_lshl_b32 s53, s4, 7")
    A(f"v_add_u32 v{tt[0]}, s53, v{vSt}")
    A(f"s_mov_b64 exec, s[{MD}:{MD+1}]")
    A(f"ds_write_b64 v{tt[0]}, {vr(vMean,2)} offset:128")
    A(f"ds_write_b64 v{vSt}, {vr(vHm,2)}")
    A("s_mov_b64 exec, -1")
    A("s_waitcnt lgkmcnt(0)")
    A("s_barrier")
    T("ae")
    SR = [V(2, 2) for _ in range(5)]
    SV = [V(8, 4) for _ in range(5)]
    vSg = V()
    A(f"v_lshlrev_b32 v{vSg}, 5, v{vG}")
    A(f"v_add_u32 v{vSg}, {STATS}, v{vSg}")
    for f in range(5):
        A(f"ds_read_b64 {vr(SR[f],2)}, v{vSt} offset:{128*f}")
    for f in range(5):
        A(f"ds_read_b128 {vr(SV[f],4)}, v{vSg} offset:{128*f}")
        A(f"ds_read_b128 {vr(SV[f]+4,4)}, v{vSg} offset:{128*f+16}")
    cq, ck = V(4, 4), V(4, 4)
    cv = V()
    A(f"v_lshlrev_b32 v{tt[0]}, 2, v{vM}")
    A(f"ds_bpermute_b32 v{cv}, v{tt[0]}, v{Dv[0]}")
    for i in range(4):
        A(f"v_mov_b32_dpp v{cq+i}, v{Dq[0]+i} row_newbcast:0 row_mask:0xf bank_mask:0xf")
        A(f"v_mov_b32_dpp v{ck+i}, v{Dk[0]+i} row_newbcast:0 row_mask:0xf bank_mask:0xf")
    A("s_waitcnt lgkmcnt(0)")
    Qp = [None] + [V(2, 2) for _ in range(4)]
    Kp = [V(2, 2) for _ in range(5)]
    VtA, VtB = V(6, 2), V(6, 2)
    Vt = {0: VtA, 1: VtA + 2, 3: VtA + 4, 2: VtB + 2, 4: VtB + 4}

    def ln_rowlane(D, cs, sr_, dst):
        for i in range(4):
            A(f"v_fma_f32 v{D+i}, -v{sr_}, v{cs+i}, v{D+i}")
        for i in range(4):
            A(f"v_mul_f32 v{D+i}, v{sr_+1}, v{D+i}")
        A(f"v_cvt_pk_bf16_f32 v{dst}, v{D}, v{D+1}")
        A(f"v_cvt_pk_bf16_f32 v{dst+1}, v{D+2}, v{D+3}")

    for f in range(5):
        ln_rowlane(Dk[f], ck, SR[f], Kp[f])
    for f in range(1, 5):
        ln_rowlane(Dq[f], cq, SR[f], Qp[f])
    prev = {1: 0, 2: 0, 3: 1, 4: 2}
    Sp = {f: Dq[f] for f in range(1, 5)}
    Ss = {f: Dk[f] for f in range(1, 5)}
    for f in range(1, 5):
        A(f"v_mfma_f32_16x16x16_bf16 {vr(Sp[f],4)}, {vr(Kp[prev[f]],2)}, {vr(Qp[f],2)}, 0")
        A(f"v_mfma_f32_16x16x16_bf16 {vr(Ss[f],4)}, {vr(Kp[f],2)}, {vr(Qp[f],2)}, 0")
    for f in range(5):
        D = Dv[f]
        for i in range(4):
            A(f"v_fma_f32 v{D+i}, -v{SV[f]+2*i}, v{cv}, v{D+i}")
        for i in range(4):
            A(f"v_mul_f32 v{D+i}, v{SV[f]+2*i+1}, v{D+i}")
        A(f"v_cvt_pk_bf16_f32 v{Vt[f]}, v{D}, v{D+1}")
        A(f"v_cvt_pk_bf16_f32 v{Vt[f]+1}, v{D+2}, v{D+3}")
    A(f"v_mov_b32 v{VtB}, v{VtA}")
    A(f"v_mov_b32 v{VtB+1}, v{VtA+1}")
    NEG = V()
    A(f"v_mov_b32 v{NEG}, 0xff800000")
    pm = {1: MPE, 2: MPO, 3: MP9, 4: MP9}
    F = range(1, 5)
    S8 = {f: [Sp[f] + i for i in range(4)] + [Ss[f] + i for i in range(4)] for f in F}
    pk = {f: Dv[f] for f in F}
    mx = {f: V() for f in F}
    m2 = {f: V() for f in F}
    for f in F:
        for i in range(4):
            A(f"v_cvt_pk_bf16_f32 v{pk[f]+i}, v{S8[f][2*i]}, v{S8[f][2*i+1]}")
    for f in F:
        for i in range(4):
            A(f"v_lshlrev_b32 v{S8[f][2*i]}, 16, v{pk[f]+i}")
            A(f"v_and_b32 v{S8[f][2*i+1]}, 0xffff0000, v{pk[f]+i}")
    for f in F:
        for i in range(4):
            A(f"v_cndmask_b32 v{S8[f][i]}, v{NEG}, v{S8[f][i]}, s[{pm[f]+2*i}:{pm[f]+2*i+1}]")
            A(f"v_cndmask_b32 v{S8[f][4+i]}, v{NEG}, v{S8[f][4+i]}, s[{MS+2*i}:{MS+2*i+1}]")
    for f in F:
        s = S8[f]
        A(f"v_max3_f32 v{mx[f]}, v{s[0]}, v{s[1]}, v{s[2]}")
        A(f"v_max3_f32 v{m2[f]}, v{s[3]}, v{s[4]}, v{s[5]}")
        A(f"v_max3_f32 v{mx[f]}, v{mx[f]}, v{s[6]}, v{s[7]}")
        A(f"v_max_f32 v{mx[f]}, v{mx[f]}, v{m2[f]}")

    def xreduce(op):
        for sw in ("v_permlane16_swap_b32", "v_permlane32_swap_b32"):
            for f in F:
                A(f"v_mov_b32 v{m2[f]}, v{mx[f]}")
            for f in F:
                A(f"{sw} v{mx[f]}, v{m2[f]}")
            for f in F:
                A(f"{op} v{mx[f]}, v{mx[f]}, v{m2[f]}")

    xreduce("v_max_f32")
    CL = "0x3eb8aa3b"
    for f in F:
        A(f"v_mul_f32 v{mx[f]}, {CL}, v{mx[f]}")
    A(f"v_mov_b32 v{tt[0]}, {CL}")
    for f in F:
        for i in range(8):
            A(f"v_fma_f32 v{S8[f][i]}, v{S8[f][i]}, v{tt[0]}, -v{mx[f]}")
    for f in F:
        for i in range(8):
            A(f"v_exp_f32 v{S8[f][i]}, v{S8[f][i]}")
    for f in F:
        s = S8[f]
        A(f"v_add_f32 v{mx[f]}, v{s[0]}, v{s[1]}")
        A(f"v_add_f32 v{m2[f]}, v{s[2]}, v{s[3]}")
        A(f"v_add_f32 v{mx[f]}, v{mx[f]}, v{s[4]}")
        A(f"v_add_f32 v{m2[f]}, v{m2[f]}, v{s[5]}")
        A(f"v_add_f32 v{mx[f]}, v{mx[f]}, v{s[6]}")
        A(f"v_add_f32 v{m2[f]}, v{m2[f]}, v{s[7]}")
        A(f"v_add_f32 v{mx[f]}, v{mx[f]}, v{m2[f]}")
    xreduce("v_add_f32")
    for f in F:
        A(f"v_rcp_f32 v{mx[f]}, v{mx[f]}")
    for f in F:
        for i in range(8):
            A(f"v_mul_f32 v{S8[f][i]}, v{S8[f][i]}, v{mx[f]}")
    for f in F:
        for i in range(4):
            A(f"v_cvt_pk_bf16_f32 v{pk[f]+i}, v{S8[f][2*i]}, v{S8[f][2*i+1]}")
    for f in F:
        a = Vt[f] - 2
        A(f"v_mfma_f32_16x16x32_bf16 {vr(Sp[f],4)}, {vr(a,4)}, {vr(pk[f],4)}, 0")
    A(f"s_lshl_b32 s53, s{RT_}, 16")
    A(f"s_lshl_b32 s54, s{CT_}, 11")
    A("s_add_u32 s53, s53, s54")
    A("s_lshr_b32 s54, s4, 1")
    A("s_lshl_b32 s54, s54, 10")
    A("s_add_u32 s53, s53, s54")
    A("s_and_b32 s54, s4, 1")
    A("s_lshl_b32 s54, s54, 3")
    A("s_add_u32 s53, s53, s54")
    if O_OFF:
        A(f"s_add_u32 s53, s53, {O_OFF}")
    for f in F:
        A(f"v_cvt_pk_bf16_f32 v{pk[f]}, v{Sp[f]}, v{Sp[f]+1}")
        A(f"v_cvt_pk_bf16_f32 v{pk[f]+1}, v{Sp[f]+2}, v{Sp[f]+3}")
        A(f"buffer_store_dwordx2 {vr(pk[f],2)}, v{vL16}, {sr(SWS)}, s53 offen")
        if f < 4:
            A("s_add_u32 s53, s53, 16384")
    T("a_st")

    def post_flag(stage, grp_s, mem_s, first=False, lab=""):
        flag_base(54, stage, grp_s)
        A(f"s_lshl_b32 s55, s{mem_s}, 4")
        A("s_add_u32 s54, s54, s55")
        A("s_lshl_b32 s55, s4, 2")
        A("s_add_u32 s54, s54, s55")
        A(f"v_mov_b32 v{t[0]}, 0")
        A("s_waitcnt vmcnt(0)")
        if first:
            A("s_mov_b32 s55, 0")
            A("L_C_NONCE:")
            A(f"v_readfirstlane_b32 s56, v{vNon}")
            A("s_cmp_lg_u32 s56, 0")
            A("s_cbranch_scc1 L_C_NONCE_OK")
            A("s_add_u32 s55, s55, 1")
            A(f"s_cmp_gt_u32 s55, {SPIN}")
            A("s_cbranch_scc1 L_C_NONCE_OK")
            A("s_lshl_b32 s56, s5, 2")
            A(f"buffer_load_dword v{vNon}, v{t[0]}, {sr(SDBG)}, s56 offen offset:128 sc1")
            A("s_waitcnt vmcnt(0)")
            A("s_branch L_C_NONCE")
            A("L_C_NONCE_OK:")
        A("s_mov_b64 exec, 1")
        A(f"buffer_store_dword v{vNon}, v{t[0]}, {sr(SWS)}, s54 offen")
        A("s_mov_b64 exec, -1")

    A("s_lshr_b32 s57, s6, 3")
    post_flag(0, 57, CT_, first=True)
    T("a_flag")

    V.n = markS

    def gemm64_pats():
        b0, b1, xx = V(), V(), V()
        A(f"v_bfe_u32 v{t[0]}, v{vL}, 2, 2")
        A(f"v_lshl_add_u32 v{t[0]}, v{vG}, 2, v{t[0]}")
        A(f"v_bfe_u32 v{t[1]}, v{t[0]}, 1, 2")
        A("s_and_b32 s53, s4, 1")
        A("s_lshl_b32 s53, s53, 1")
        A(f"v_xor_b32 v{t[1]}, s53, v{t[1]}")
        A(f"v_and_b32 v{t[2]}, 3, v{vL}")
        A(f"v_lshlrev_b32 v{t[2]}, 3, v{t[2]}")
        A(f"v_lshl_add_u32 v{t[2]}, v{t[1]}, 5, v{t[2]}")
        A(f"v_lshl_add_u32 v{b0}, v{t[0]}, 7, v{t[2]}")
        A(f"v_xor_b32 v{b1}, 32, v{b0}")
        A("s_lshr_b32 s53, s4, 1")
        A("s_lshl_b32 s53, s53, 11")
        A(f"v_add_u32 v{xx}, s53, v{vL16}")
        return [Pat(A, V, b0), Pat(A, V, b1)], Pat(A, V, xx)

    pB, pX = gemm64_pats()
    markG = V.n

    def gemm64(kw, kx, nk, G, tn):
        V.n = markG
        D = [[V(4, 4) for _ in range(2)] for _ in range(2)]
        for e in range(2):
            for jo in range(2):
                for i in range(4):
                    A(f"v_mov_b32 v{D[e][jo]+i}, 0")
        bf = [[dict(W=[V(4, 4), V(4, 4)], X=[V(4, 4), V(4, 4)]) for _ in range(2)] for _ in range(2)]
        starts = set()
        acc = 0
        for g in G:
            starts.add(acc)
            acc += g
        units = []
        for p0 in range(0, nk, 2):
            ps = list(range(p0, min(p0 + 2, nk)))

            def rd(bi, ps=ps):
                r = []
                for i, p in enumerate(ps):
                    wa, xa = BL[(kw, p)].addr, BL[(kx, p)].addr
                    for jo in range(2):
                        for hh in range(2):
                            r.append(f"ds_read_b64_tr_b16 {vr(bf[bi][i]['W'][jo]+2*hh,2)}, {pB[jo](wa + hh*2048)}")
                    for e in range(2):
                        r.append(f"ds_read_b128 {vr(bf[bi][i]['X'][e],4)}, {pX(xa + e*1024)}")
                return r

            def mf(bi, ps=ps):
                m = []
                for i, p in enumerate(ps):
                    for e in range(2):
                        for jo in range(2):
                            m.append(mfma(D[e][jo], bf[bi][i]['W'][jo], bf[bi][i]['X'][e]))
                return m
            units.append((p0 in starts, rd, mf))
        return D, run_units(A, units, T, tn)

    D, gen = gemm64("BW", "BO", 16, BGRP, "b")
    for mf in gen:
        A("s_barrier")
        for m in mf:
            A(m)
    T("b_mf_done")
    A(f"s_lshl_b32 s53, s{RT_}, 16")
    A("s_lshr_b32 s54, s4, 1")
    A("s_lshl_b32 s54, s54, 15")
    A("s_add_u32 s53, s53, s54")
    A(f"s_lshl_b32 s54, s{CT_}, 11")
    A("s_add_u32 s53, s53, s54")
    A("s_and_b32 s54, s4, 1")
    A("s_lshl_b32 s54, s54, 10")
    A("s_add_u32 s53, s53, s54")
    A(f"s_add_u32 s53, s53, {H_OFF}")

    def resid(d, rx, o):
        A(f"v_cvt_pk_bf16_f32 v{t[0]}, v{d}, v{d+1}")
        A(f"v_cvt_pk_bf16_f32 v{t[1]}, v{d+2}, v{d+3}")
        A(f"v_lshlrev_b32 v{d}, 16, v{t[0]}")
        A(f"v_and_b32 v{d+1}, 0xffff0000, v{t[0]}")
        A(f"v_lshlrev_b32 v{d+2}, 16, v{t[1]}")
        A(f"v_and_b32 v{d+3}, 0xffff0000, v{t[1]}")
        A(f"v_lshlrev_b32 v{t[0]}, 16, v{rx}")
        A(f"v_and_b32 v{t[1]}, 0xffff0000, v{rx}")
        A(f"v_lshlrev_b32 v{t[2]}, 16, v{rx+1}")
        A(f"v_and_b32 v{t[3]}, 0xffff0000, v{rx+1}")
        for i in range(4):
            A(f"v_add_f32 v{d+i}, v{d+i}, v{t[i]}")
        A(f"v_cvt_pk_bf16_f32 v{o}, v{d}, v{d+1}")
        A(f"v_cvt_pk_bf16_f32 v{o+1}, v{d+2}, v{d+3}")

    for e in range(2):
        for jo in range(2):
            resid(D[e][jo], RX[2 * e + jo], RH[e] + 2 * jo)
        A(f"buffer_store_dwordx4 {vr(RH[e],4)}, v{vL16}, {sr(SWS)}, s53 offen")
        if e == 0:
            A("s_add_u32 s53, s53, 16384")
    T("b_st")
    A("s_lshr_b32 s57, s6, 4")
    post_flag(1, 57, C15_)
    T("b_flag")

    V.n = markG
    c0, c1, ch = V(), V(), V()
    A(f"v_bfe_u32 v{t[0]}, v{vL}, 2, 2")
    A(f"v_lshl_add_u32 v{t[0]}, v{vG}, 2, v{t[0]}")
    A(f"v_mul_u32_u24 v{t[0]}, 192, v{t[0]}")
    A(f"v_and_b32 v{t[1]}, 3, v{vL}")
    A(f"v_lshl_add_u32 v{t[0]}, v{t[1]}, 3, v{t[0]}")
    A(f"v_and_b32 v{t[1]}, 1, v{vG}")
    A(f"v_lshlrev_b32 v{t[1]}, 5, v{t[1]}")
    A(f"v_add_u32 v{c0}, v{t[0]}, v{t[1]}")
    A(f"v_sub_u32 v{c1}, v{t[0]}, v{t[1]}")
    A(f"v_add_u32 v{c1}, 32, v{c1}")
    A("s_lshl_b32 s53, s4, 11")
    A(f"v_add_u32 v{ch}, s53, v{vL16}")
    pC = [Pat(A, V, c0), Pat(A, V, c1)]
    pH = Pat(A, V, ch)
    D = [[V(4, 4) for _ in range(6)] for _ in range(2)]
    SS = [V(4, 4) for _ in range(2)]
    SQ = [V(4, 4) for _ in range(2)]
    CSD = [V(4, 4) for _ in range(6)]
    for b in D[0] + D[1] + SS + SQ + CSD:
        for i in range(4):
            A(f"v_mov_b32 v{b+i}, 0")
    cb = [dict(W=[V(4, 4) for _ in range(6)], X=[V(4, 4), V(4, 4)]) for _ in range(2)]
    A(f"v_lshlrev_b32 v{t[0]}, 3, v{vL}")
    A(f"v_add_u32 v{t[0]}, {STATS}, v{t[0]}")
    A(f"ds_write_b64 v{t[0]}, {vr(D[0][0],2)}")
    M0_ = 60
    A(f"v_cmp_eq_u32 s[{M0_}:{M0_+1}], 0, v{vM}")
    A("s_waitcnt lgkmcnt(0)")

    def c_reads(p):
        wa = BL[("CW", p >> 1)].addr + (p & 1) * 6144
        ha = BL[("CH", p)].addr

        def f(bi):
            r = []
            for e in range(2):
                r.append(f"ds_read_b128 {vr(cb[bi]['X'][e],4)}, {pH(ha + e*1024)}")
            for j in range(6):
                for hh in range(2):
                    r.append(f"ds_read_b64_tr_b16 {vr(cb[bi]['W'][j]+2*hh,2)}, {pC[j&1](wa + hh*3072 + (j&~1)*32)}")
            return r
        return f

    def c_mf(p):
        def f(bi):
            B = cb[bi]
            m = []
            for e in range(2):
                m.append(mfma(SS[e], vOnes, B['X'][e]))
                m.append(mfma(SQ[e], B['X'][e], B['X'][e]))
            for j in range(6):
                for e in range(2):
                    m.append(mfma(D[e][j], B['W'][j], B['X'][e]))
            lab = f"L_C_cs{p}"
            x = [f"s_cmp_lg_u32 s4, {p&3}", f"s_cbranch_scc1 {lab}"]
            for j in range(6):
                x.append(mfma(CSD[j], B['W'][j], vOnes))
            x.append(f"{lab}:")
            m[-1] = m[-1] + "\n" + "\n".join(x)
            return m
        return f

    for mf in run_units(A, [(p % 2 == 0, c_reads(p), c_mf(p)) for p in range(16)], T, "c"):
        for m in mf:
            A(m)
    A("s_nop 7")
    T("c_mf_done")
    A(f"v_lshlrev_b32 v{t[0]}, 4, v{vG}")
    A(f"v_add_u32 v{t[0]}, {STATS}, v{t[0]}")
    A(f"s_mov_b64 exec, s[{M0_}:{M0_+1}]")
    for j in range(6):
        for i in range(4):
            A(f"ds_add_f32 v{t[0]}, v{CSD[j]+i} offset:{64*j+4*i}")
    A("s_mov_b64 exec, -1")
    MR = [V(2, 2) for _ in range(2)]
    z = V()
    for e in range(2):
        sq = SQ[e]
        A(f"v_cndmask_b32 v{t[1]}, v{sq}, v{sq+1}, s[{M1}:{M1+1}]")
        A(f"v_cndmask_b32 v{t[1]}, v{t[1]}, v{sq+2}, s[{M2}:{M2+1}]")
        A(f"v_cndmask_b32 v{t[1]}, v{t[1]}, v{sq+3}, s[{M3}:{M3+1}]")
        A(f"v_cndmask_b32 v{t[1]}, 0, v{t[1]}, s[{MD}:{MD+1}]")
        for sw in ("v_permlane16_swap_b32", "v_permlane32_swap_b32"):
            A(f"v_mov_b32 v{z}, v{t[1]}")
            A(f"{sw} v{t[1]}, v{z}")
            A(f"v_add_f32 v{t[1]}, v{t[1]}, v{z}")
        ln_stats(A, SS[e], t[1], MR[e], MR[e] + 1, t[2], t[3])
    A("s_waitcnt lgkmcnt(0)")
    A("s_barrier")
    T("ce")
    A(f"s_cmp_eq_u32 s{C15_}, 15")
    A("s_cbranch_scc1 L_C_SKIPC")
    for j in range(6):
        A(f"ds_read_b128 {vr(CSD[j],4)}, v{t[0]} offset:{64*j}")
    A(f"s_lshl_b32 s53, s{RRT_}, 3")
    A("s_lshl_b32 s54, s4, 1")
    A("s_add_u32 s53, s53, s54")
    A("s_mul_i32 s53, s53, 44032")
    A(f"s_mul_i32 s54, s{C15_}, 3072")
    A("s_add_u32 s53, s53, s54")
    A(f"s_add_u32 s58, s53, {HID_OFF}")
    A(f"s_add_u32 s59, s53, {HID_OFF+44032}")
    A("s_waitcnt lgkmcnt(0)")
    OUT = [V(4, 4) for _ in range(2)]
    for jj in range(3):
        for e in range(2):
            for jo in range(2):
                j = 2 * jj + jo
                d = D[e][j]
                for i in range(4):
                    A(f"v_fma_f32 v{d+i}, -v{MR[e]}, v{CSD[j]+i}, v{d+i}")
                for i in range(4):
                    A(f"v_mul_f32 v{d+i}, v{MR[e]+1}, v{d+i}")
                for i in range(4):
                    A(f"v_max_f32 v{d+i}, 0, v{d+i}")
                A(f"v_cvt_pk_bf16_f32 v{OUT[e]+2*jo}, v{d}, v{d+1}")
                A(f"v_cvt_pk_bf16_f32 v{OUT[e]+2*jo+1}, v{d+2}, v{d+3}")
            off = f" offset:{jj*1024}" if jj else ""
            A(f"buffer_store_dwordx4 {vr(OUT[e],4)}, v{vL16}, {sr(SWS)}, s{58+e} offen{off}")
        if jj == 0:
            A(f"s_cmp_eq_u32 s{C15_}, 14")
            A("s_cbranch_scc1 L_C_CST")
    A("L_C_CST:")
    T("c_st")
    post_flag(2, 57, C15_)
    A("L_C_SKIPC:")
    T("c_flag")

    D, gen = gemm64("DW", "DH", 43, DGRP, "d")
    for mf in gen:
        for m in mf:
            A(m)
    T("d_mf_done")
    vOo = V()
    A(f"v_and_b32 v{t[0]}, 1, v{vG}")
    A(f"v_lshlrev_b32 v{t[0]}, 5, v{t[0]}")
    A(f"v_lshrrev_b32 v{t[1]}, 1, v{vG}")
    A(f"v_lshl_add_u32 v{t[0]}, v{t[1]}, 4, v{t[0]}")
    A(f"v_lshl_add_u32 v{vOo}, v{vM}, 11, v{t[0]}")
    OUT = [V(4, 4) for _ in range(2)]
    for e in range(2):
        for jo in range(2):
            resid(D[e][jo], RH[e] + 2 * jo, OUT[e] + 2 * jo)
        o = OUT[e]
        A(f"v_permlane16_swap_b32 v{o}, v{o+2}")
        A(f"v_permlane16_swap_b32 v{o+1}, v{o+3}")
        off = " offset:1024" if e else ""
        A(f"buffer_store_dwordx4 {vr(o,4)}, v{vOo}, {sr(SOUT)}, s52 offen{off}")
    T.dump(t[0])
    A("s_endpgm")
    vhi_c = V.hi

    A("L_PROD:")
    T = Tp
    V.n = mark0
    vXd0, vXd1, vWd0, vWd1 = [V() for _ in range(4)]
    A(f"v_lshrrev_b32 v{t[0]}, 3, v{vL}")
    A(f"v_and_b32 v{t[1]}, 7, v{vL}")
    A(f"v_lshrrev_b32 v{t[2]}, 1, v{t[0]}")
    A(f"v_xor_b32 v{t[2]}, v{t[1]}, v{t[2]}")
    A(f"v_lshlrev_b32 v{t[2]}, 4, v{t[2]}")
    A(f"v_lshl_add_u32 v{vXd0}, v{t[0]}, 11, v{t[2]}")
    A(f"v_xor_b32 v{vXd1}, 64, v{vXd0}")
    A(f"v_and_b32 v{t[2]}, 2, v{t[0]}")
    A(f"v_xor_b32 v{t[2]}, v{t[1]}, v{t[2]}")
    A(f"v_lshlrev_b32 v{t[2]}, 4, v{t[2]}")
    A(f"v_mul_u32_u24 v{t[3]}, 3072, v{t[0]}")
    A(f"v_add_u32 v{vWd0}, v{t[3]}, v{t[2]}")
    A(f"v_xor_b32 v{vWd1}, 64, v{vWd0}")
    vHd = [V() for _ in range(4)]
    A("s_lshl_b32 s58, s4, 6")
    for j in range(4):
        A(f"s_add_u32 s59, s58, {16*j}")
        A(f"v_xor_b32 v{vHd[j]}, s59, v{vL16}")
    vWg = V()
    A(f"v_and_b32 v{t[2]}, 6, v{t[0]}")
    A(f"v_xor_b32 v{t[1]}, v{t[1]}, v{t[2]}")
    A(f"v_lshlrev_b32 v{t[1]}, 4, v{t[1]}")
    A(f"v_lshl_add_u32 v{vWg}, v{t[0]}, 10, v{t[1]}")
    vWc = [V() for _ in range(3)]
    for k in range(3):
        A(f"v_add_u32 v{t[0]}, {64*k}, v{vL}")
        A(f"v_mul_u32_u24 v{t[1]}, 171, v{t[0]}")
        A(f"v_lshrrev_b32 v{t[1]}, 11, v{t[1]}")
        A(f"v_mul_u32_u24 v{t[2]}, 12, v{t[1]}")
        A(f"v_sub_u32 v{t[2]}, v{t[0]}, v{t[2]}")
        A(f"v_bfe_u32 v{t[3]}, v{t[1]}, 2, 1")
        A(f"v_lshlrev_b32 v{t[3]}, 1, v{t[3]}")
        A(f"v_xor_b32 v{t[2]}, v{t[2]}, v{t[3]}")
        A(f"v_lshlrev_b32 v{t[2]}, 4, v{t[2]}")
        A(f"v_mul_u32_u24 v{t[1]}, 2752, v{t[1]}")
        A(f"v_add_u32 v{vWc[k]}, v{t[1]}, v{t[2]}")
    vL4, vPo, vNo, vZ = V(), V(), V(), V()
    A(f"v_lshlrev_b32 v{vL4}, 2, v{vL}")
    A(f"v_mov_b32 v{vZ}, 0")
    W1K, W2K, W3K, W4K = 60, 61, 62, 63
    A(f"s_lshl_b32 s{W1K}, s4, 10")
    A(f"s_lshl_b32 s{W2K}, s4, 11")
    A(f"s_mul_i32 s{W3K}, s4, 3072")
    A(f"s_lshl_b32 s{W4K}, s4, 12")
    A("s_barrier")
    get_slot()
    T("slot")
    sXb0, sXb1, sWb, sHb, sBW, sBO, sCW, sCH, sDH, sT = 64, 65, 66, 67, 68, 69, 70, 71, 72, 73
    A(f"s_lshl_b32 s58, s{RT_}, 16")
    A("s_lshr_b32 s59, s4, 1")
    A("s_lshl_b32 s59, s59, 15")
    A(f"s_add_u32 s{sXb0}, s58, s59")
    A("s_and_b32 s59, s4, 1")
    A("s_lshl_b32 s59, s59, 10")
    A(f"s_add_u32 s{sXb0}, s{sXb0}, s59")
    A(f"s_add_u32 s{sXb1}, s{sXb0}, 16384")
    A(f"s_mul_i32 s{sWb}, s4, 49152")
    A(f"s_lshl_b32 s59, s{CT_}, 7")
    A(f"s_add_u32 s{sWb}, s{sWb}, s59")
    A(f"s_lshl_b32 s{sHb}, s4, 13")
    A(f"s_add_u32 s{sBW}, s{sHb}, s59")
    A(f"s_add_u32 s{sHb}, s{sHb}, s58")
    A("s_cmp_lt_u32 s4, 2")
    A("s_cselect_b32 s59, 16, 31")
    A("s_lshl_b32 s59, s59, 10")
    A(f"s_sub_u32 s{sHb}, s{sHb}, s59")
    A("s_lshl_b32 s59, s4, 14")
    A(f"s_add_u32 s{sBO}, s58, s59")
    if O_OFF:
        A(f"s_add_u32 s{sBO}, s{sBO}, {O_OFF}")
    A(f"s_mul_i32 s{sCW}, s4, 44032")
    A(f"s_mul_i32 s59, s{C15_}, 192")
    A(f"s_add_u32 s{sCW}, s{sCW}, s59")
    A(f"s_lshl_b32 s{sCH}, s{RRT_}, 17")
    A("s_lshl_b32 s59, s4, 15")
    A(f"s_add_u32 s{sCH}, s{sCH}, s59")
    A(f"s_add_u32 s{sCH}, s{sCH}, {H_OFF}")
    A(f"s_lshl_b32 s{sDH}, s{RT_}, 2")
    A(f"s_add_u32 s{sDH}, s{sDH}, s4")
    A(f"s_mul_i32 s{sDH}, s{sDH}, 44032")
    A(f"s_add_u32 s{sDH}, s{sDH}, {HID_OFF}")

    def ld(v, srd_, soff, m0base, m0imm, off=0):
        A(f"s_add_u32 m0, s{m0base}, {m0imm - off}")
        o = f" offset:{off}" if off else ""
        A(f"buffer_load_dwordx4 v{v}, {sr(srd_)}, s{soff} offen{o} lds")

    def issue(b):
        k, i, a = b.kind, b.idx, b.addr
        if k == "HA":
            A("s_cmp_eq_u32 s4, 0")
            A(f"s_cselect_b32 s58, {DUMMY}, s{W4K}")
            for j in range(4):
                A(f"s_add_u32 s{sT}, s{sHb}, {2048*j}")
                if j == 0:
                    A("s_mov_b32 m0, s58")
                else:
                    A(f"s_add_u32 m0, s{W4K}, {1024*j}")
                A(f"buffer_load_dwordx4 v{vHd[j]}, {sr(SX)}, s{sT} offen lds")
        elif k == "AC":
            for e in range(2):
                ld(vXd1 if e else vXd0, SX, sXb1 if e else sXb0, W2K, a + e * 1024, i * 128)
            for e in range(2):
                A(f"s_add_u32 s{sT}, s{sWb}, {i*196608 + e*24576}")
                for sg in range(3):
                    ld(vWd1 if e else vWd0, SWQ, sT, W2K, a + 8192 + sg * 8192 + e * 1024, sg * 1024)
        elif k in ("BW", "DW"):
            A(f"s_add_u32 s{sT}, s{sBW}, {i*32768}")
            ld(vWg, SWO if k == "BW" else SW2, sT, W1K, a)
        elif k in ("BO", "DH"):
            A(f"s_add_u32 s{sT}, s{sBO if k == 'BO' else sDH}, {i*1024}")
            ld(vL16, SWS, sT, W1K, a)
        elif k == "CW":
            A(f"s_add_u32 s{sT}, s{sCW}, {i*64*2752}")
            for x in range(3):
                ld(vWc[x], SW1, sT, W3K, a + x * 1024)
        elif k == "CH":
            for e in range(2):
                A(f"s_add_u32 s{sT}, s{sCH}, {i*1024 + e*16384}")
                ld(vL16, SWS, sT, W2K, a + e * 1024)

    def poll(dep):
        stage = "ABC".index(dep)
        n = {"A": 32, "B": 64, "C": 60}[dep]
        if dep == "A":
            A("s_mov_b32 s58, 0")
            A("s_lshl_b32 s59, s5, 2")
            A("L_P_NONCE:")
            A(f"buffer_load_dword v{vNo}, v{vZ}, {sr(SDBG)}, s59 offen offset:128 sc1")
            A("s_waitcnt vmcnt(0)")
            A(f"v_readfirstlane_b32 s74, v{vNo}")
            A("s_add_u32 s58, s58, 1")
            A(f"s_cmp_gt_u32 s58, {SPIN}")
            A("s_cbranch_scc1 L_P_NONCE_OK")
            A("s_cmp_eq_u32 s74, 0")
            A("s_cbranch_scc1 L_P_NONCE")
            A("L_P_NONCE_OK:")
        A(f"s_lshr_b32 s59, s6, {3 if dep == 'A' else 4}")
        flag_base(75, stage, 59)
        A("s_mov_b32 s58, 0")
        if n < 64:
            A(f"s_mov_b32 s76, -1\ns_mov_b32 s77, {hex((1 << (n-32)) - 1)}")
            A("s_mov_b64 exec, s[76:77]")
        A(f"L_P_POLL{dep}:")
        A(f"buffer_load_dword v{vPo}, v{vL4}, {sr(SWS)}, s75 offen sc1")
        A("s_waitcnt vmcnt(0)")
        A(f"v_cmp_ne_u32 vcc, s74, v{vPo}")
        A("s_add_u32 s58, s58, 1")
        A(f"s_cmp_gt_u32 s58, {SPIN}")
        A(f"s_cbranch_scc1 L_P_POLL{dep}_OK")
        A(f"s_cbranch_vccnz L_P_POLL{dep}")
        A(f"L_P_POLL{dep}_OK:")
        if n < 64:
            A("s_mov_b64 exec, -1")

    issued = []
    for slot, ops in zip(range(-1, len(steps)), prog):
        for op in ops:
            if op[0] == "ld":
                issue(op[1])
                issued.append(op[1])
            else:
                T("poll" + op[1])
                poll(op[1])
                T("polled" + op[1])
                issued = []
        nxt = slot + 1
        if nxt < len(steps):
            cnt = 0
            for b in reversed(issued):
                if b.need <= nxt:
                    break
                cnt += b.nl
            else:
                cnt = None
            if cnt is not None:
                assert cnt < 64
                A(f"s_waitcnt vmcnt({cnt})")
                while issued and sum(x.nl for x in issued) > cnt:
                    issued.pop(0)
            if steps[nxt] in ("a0", "a4", "ae", "b0", "be", "c0", "c4", "ce", "d0", "d4", "d8"):
                T("pre_" + steps[nxt])
            A("s_barrier")
    T.dump(t[0])
    A("L_END:")
    A("s_endpgm")
    out = f"; @launch grid=(256,1,1) block=(512,1,1) lds={LDS_TOTAL}\n"
    out += '.amdgcn_target "amdgcn-amd-amdhsa--gfx950"\n.text\n' + kern_hdr(KNAME) + A.finish()
    out += '.section .rodata,"a"\n' + desc(KNAME, max(V.hi, vhi_c))
    return out, Tc.names, Tp.names


if __name__ == "__main__":
    o, a, b = build(verbose=True)
    open("m1.s", "w").write(o)
    o, a, b = build(instr=True)
    open("m1t.s", "w").write(o)
    import json
    json.dump([a, b], open("m1t.json", "w"))
```

```python
import sys
sys.path.insert(0, "work")
from asmlib import *

KNAME = "sequential_preLN__sliding_local_dilated__dense_activation_relu__prompt_kernel"
O_OFF = 0
H_OFF = 0x200000
HID_OFF = 0x400000
FLAG_OFF = 0x980000
TS_OFF = 0x1000000
WS_SZ = 0x10000000
ONES = "0x3f803f80"
LDS_TOTAL = 163840
MISC = 161792
STATS = MISC
BCAST = MISC + 896
DUMMY = MISC + 1024
SPIN = 20000
PF = 1
SWO_, SW1_, SW2_ = 16, 20, 24
PFH = 1
CHK = 10
TOUCH = [("a0", "end", ["WQ0", "WQ1", "WQ2", "X"]), ("a5", "end", ["O", "H", "W20", "W21"]), ("a6", "end", ["W10", "W11", "W12", "W13"]),
         ("c4", "end", ["HD0", "HD1", "HD2", "W22"]), ("c5", "end", ["W23", "W24", "W25"])]
EARLY = "a5"
TLBT = 0
PRE = 4
CPF = 1
RXU = 6
NOISSUE = ()
ROTA = 1
DBG = 0
PFU = {0: (SWO_, 0), 3: (SW1_, 0), 6: (SW1_, 1), 9: (SW2_, 0), 12: (SW2_, 1)}

SX, SWQ, SWO, SW1, SW2, SOUT, SDBG, SWS = 8, 12, 16, 20, 24, 28, 32, 36


def sr(b):
    return f"s[{b}:{b+3}]"


def srd(A, b, lo, hi, size):
    A(f"s_mov_b32 s{b}, s{lo}")
    A(f"s_and_b32 s{b+1}, s{hi}, 0xffff")
    A(f"s_mov_b32 s{b+2}, {size}")
    A(f"s_mov_b32 s{b+3}, 0x20000")


def rnd_bf16(A, dst, src):
    A(f"v_cvt_pk_bf16_f32 v{dst}, v{src}, v{src}")
    A(f"v_lshlrev_b32 v{dst}, 16, v{dst}")


def ln_stats(A, vsum, vsq, vmean, vrstd, t0, t1):
    A(f"v_mul_f32 v{t0}, 0x3b000000, v{vsum}")
    A(f"v_mul_f32 v{t1}, 0x3b000000, v{vsq}")
    A(f"v_fma_f32 v{t1}, -v{t0}, v{t0}, v{t1}")
    A(f"v_max_f32 v{t1}, 0, v{t1}")
    rnd_bf16(A, vmean, t0)
    rnd_bf16(A, t1, t1)
    A(f"v_add_f32 v{t1}, 0x3727c5ac, v{t1}")
    rnd_bf16(A, t1, t1)
    A(f"v_sqrt_f32 v{t1}, v{t1}")
    rnd_bf16(A, t1, t1)
    A(f"v_rcp_f32 v{vrstd}, v{t1}")


class Blk:
    def __init__(self, kind, idx, size, need, dep=None, nl=1):
        self.kind, self.idx, self.size, self.need, self.dep, self.nl = kind, idx, size, need, dep, nl
        self.addr = None
        self.slot = None

    def __repr__(self):
        return f"{self.kind}{self.idx}@{self.addr//1024 if self.addr is not None else None}"


BGRP = [4, 4, 4, 2, 2]
DGRP = [4] * 10 + [2, 1]
RESERVE = dict(A=0, B=48 * 1024, C=40 * 1024, D=48 * 1024)


def make_schedule(verbose=False):
    steps = [f"a{i}" for i in range(8)] + ["ae"] + [f"b{i}" for i in range(len(BGRP))] + ["be"] + \
            [f"c{i}" for i in range(8)] + ["ce"] + [f"d{i}" for i in range(len(DGRP))]
    si = {s: i for i, s in enumerate(steps)}

    def grp_of(G, p):
        acc = 0
        for i, g in enumerate(G):
            acc += g
            if p < acc:
                return i
    blks = []
    halo = Blk("HA", 0, 16384, si["a0"], nl=4)
    halo.last = si["a7"]
    blks.append(halo)
    for c in range(8):
        blks.append(Blk("AC", c, 32768, si[f"a{c}"], nl=8))
    for p in range(16):
        blks.append(Blk("BW", p, 4096, si[f"b{grp_of(BGRP,p)}"]))
        blks.append(Blk("BO", p, 4096, si[f"b{grp_of(BGRP,p)}"], dep="A"))
    for c in range(8):
        blks.append(Blk("CW", c, 12288, si[f"c{c}"], nl=3))
        for pp in range(2):
            blks.append(Blk("CH", 2 * c + pp, 8192, si[f"c{c}"], dep="B", nl=2))
    for p in range(43):
        blks.append(Blk("DW", p, 4096, si[f"d{grp_of(DGRP,p)}"]))
        blks.append(Blk("DH", p, 4096, si[f"d{grp_of(DGRP,p)}"], dep="C"))
    for b in blks:
        if not hasattr(b, "last"):
            b.last = b.need
    PG = 2048
    NP = MISC // PG
    free = [True] * NP

    def alloc(size, high):
        n = size // PG
        rng = range(NP - n, -1, -1) if high else range(0, NP - n + 1)
        for s in rng:
            if all(free[s:s + n]):
                for i in range(s, s + n):
                    free[i] = False
                return s * PG
        return None

    def release(b):
        for i in range(b.addr // PG, (b.addr + b.size) // PG):
            free[i] = True
    pollslot = {"A": si["ae"], "B": si["be"], "C": si["ce"]}
    polled = set()
    pending = sorted(blks, key=lambda b: (b.need, 0 if b.dep else 1))
    prog = []
    live = []
    for slot in range(-1, len(steps)):
        ops = []
        for b in list(live):
            if b.last < slot:
                release(b)
                live.remove(b)

        def issue_pass():
            stop_indep = False
            for b in list(pending):
                if b.dep and b.dep not in polled:
                    continue
                if b.kind not in ("HA", "AC") and slot < si[EARLY]:
                    stop_indep = True
                    continue
                if not b.dep and b.kind not in ("HA", "AC") and slot >= 0 and steps[slot] in NOISSUE:
                    stop_indep = True
                    continue
                if b.kind == "AC" and b.idx > slot + PRE:
                    continue
                if not b.dep and stop_indep:
                    continue
                blocked = [x for x in pending if x.dep and x.dep not in polled and x.need <= b.need]
                if blocked and not b.dep:
                    d = blocked[0].dep
                    nxt = {"A": "B", "B": "C", "C": "D"}[d]
                    res = min(RESERVE[nxt], sum(x.size for x in blocked if x.dep == d))
                    proj = sum(free) * PG - b.size + sum(x.size for x in live if x.last < pollslot[d])
                    proj -= sum(x.size for x in pending if x is not b and x.need < b.need and x.last >= pollslot[d] and not (x.dep == d))
                    if proj < res:
                        stop_indep = True
                        continue
                elif not b.dep:
                    early = sum(x.size for x in pending if x.dep and x.need < b.need)
                    if early and sum(free) * PG - b.size < min(early, 16384):
                        stop_indep = True
                        continue
                a = alloc(b.size, high=(b.dep is None and b.kind not in ("HA", "AC")))
                if a is None:
                    if b.dep:
                        break
                    stop_indep = True
                    continue
                b.addr, b.slot = a, slot
                pending.remove(b)
                live.append(b)
                ops.append(("ld", b))
        issue_pass()
        for d, ps in pollslot.items():
            if ps == slot:
                ops.append(("poll", d))
                polled.add(d)
                issue_pass()
        prog.append(ops)
    assert not pending, pending
    for b in blks:
        assert b.slot < b.need, (b, b.slot, b.need)
    if verbose:
        for slot, ops in zip(range(-1, len(steps)), prog):
            print(steps[slot] if slot >= 0 else "pre", [o[1] for o in ops])
    B = {(b.kind, b.idx): b for b in blks}
    return steps, prog, B


class TS:
    def __init__(self, A, vreg, on):
        self.A, self.v, self.on, self.n = A, vreg, on, 0
        self.names = []

    def __call__(self, name=""):
        if not self.on:
            return
        if DBG and name in ("a_st", "b_st", "c_st", "d_mf_done"):
            return
        A = self.A
        A("s_memtime s[98:99]")
        A("s_waitcnt lgkmcnt(0)")
        A(f"v_writelane_b32 v{self.v}, s98, {self.n}")
        self.names.append(name)
        self.n += 1
        assert self.n <= 60

    def dump(self, vt):
        if not self.on:
            return
        A = self.A
        self("end")
        A("s_memrealtime s[98:99]")
        A("s_waitcnt lgkmcnt(0)")
        A(f"v_writelane_b32 v{self.v}, s98, 62")
        if DBG:
            lab = f"L_DBG{vt}{self.n}"
            A(f"s_cmp_lg_u32 s2, {DBG-1}")
            A(f"s_cbranch_scc1 {lab}")
            A("s_cmp_lg_u32 s3, 0")
            A(f"s_cbranch_scc1 {lab}")
            A(f"v_readlane_b32 s99, v{self.v}, 61")
            A("s_sub_u32 s98, s98, s99")
            A(f"v_readlane_b32 s99, v{self.v}, 0")
            A(f"v_subrev_u32 v{self.v}, s99, v{self.v}")
            A(f"v_writelane_b32 v{self.v}, s98, 15")
            A(f"v_writelane_b32 v{self.v}, s5, 0")
            A(f"v_and_b32 v{vt}, 63, v0")
            A(f"v_lshlrev_b32 v{vt}, 2, v{vt}")
            A("s_mov_b64 exec, 0xffff")
            A(f"buffer_store_dword v{self.v}, v{vt}, {sr(SDBG)}, 0 offen")
            A("s_mov_b64 exec, -1")
            A(f"{lab}:")
            return
        A(f"v_writelane_b32 v{self.v}, s5, 63")
        A(f"v_writelane_b32 v{self.v}, s6, 60")
        A("s_lshl_b32 s98, s2, 3")
        A("s_add_u32 s98, s98, s3")
        A("s_lshl_b32 s98, s98, 8")
        A(f"s_add_u32 s98, s98, {TS_OFF}")
        A(f"v_and_b32 v{vt}, 63, v0")
        A(f"v_lshlrev_b32 v{vt}, 2, v{vt}")
        A(f"buffer_store_dword v{self.v}, v{vt}, {sr(SWS)}, s98 offen")


class Pat:
    def __init__(self, A, V, v0, wins=(0, 1, 2)):
        self.b = {0: v0}
        for wdw in wins:
            if wdw:
                self.b[wdw] = V()
                A(f"v_add_u32 v{self.b[wdw]}, {65536*wdw}, v{v0}")

    def __call__(self, addr):
        return f"v{self.b[addr >> 16]} offset:{addr & 0xffff}"


def interleave(A, mf, rd, bar):
    nm, nr = len(mf), len(rd)
    per = max(1, -(-nr // max(1, nm - 1)))
    start = max(0, nm - 1 - -(-nr // per)) if bar else 0
    if bar and start > 6:
        start = 6
    ri = 0
    for i, m in enumerate(mf):
        if i == start and bar:
            A("s_barrier")
        A(m)
        if i >= start:
            for _ in range(per):
                if ri < nr:
                    A(rd[ri])
                    ri += 1
    while ri < nr:
        A(rd[ri])
        ri += 1


def run_units(A, units, T=None, tn=""):
    A("s_barrier")
    if T:
        T(tn + "0")
    for r in units[0][1](0):
        A(r)
    for u in range(len(units)):
        A("s_waitcnt lgkmcnt(0)")
        mf = units[u][2](u & 1)
        if u + 1 < len(units):
            interleave(A, mf, units[u + 1][1]((u + 1) & 1), units[u + 1][0])
        else:
            yield mf


def mfma(D, a, b, c=None):
    return f"v_mfma_f32_16x16x32_bf16 {vr(D,4)}, {vr(a,4)}, {vr(b,4)}, {vr(D,4) if c is None else c}"


def build(instr=False, verbose=False):
    steps, prog, BL = make_schedule(verbose)
    A = Asm()
    A("s_cmp_ge_u32 s2, 256")
    A("s_cbranch_scc1 L_END")
    A("s_load_dwordx16 s[40:55], s[0:1], 0")
    A("s_load_dwordx2 s[56:57], s[0:1], 64")
    V = Alloc(1)
    vTS = V()
    vL, vM, vG, vL16 = V(), V(), V(), V()
    t = [V() for _ in range(8)]
    A(f"v_lshrrev_b32 v{t[0]}, 6, v0")
    A(f"v_and_b32 v{vL}, 63, v0")
    A(f"v_readfirstlane_b32 s3, v{t[0]}")
    A(f"v_and_b32 v{vM}, 15, v{vL}")
    A(f"v_lshrrev_b32 v{vG}, 4, v{vL}")
    A(f"v_lshlrev_b32 v{vL16}, 4, v{vL}")
    A("s_getreg_b32 s5, hwreg(HW_REG_XCC_ID)")
    A("s_and_b32 s5, s5, 7")
    A("s_and_b32 s4, s3, 3")
    Tc = TS(A, vTS, instr)
    Tp = TS(A, vTS, instr)
    Tc("start")
    if instr:
        A("s_memrealtime s[98:99]")
        A("s_waitcnt lgkmcnt(0)")
        A(f"v_writelane_b32 v{vTS}, s98, 61")
    Tp.names.append("start")
    Tp.n = Tc.n
    A("s_waitcnt lgkmcnt(0)")
    srd(A, SX, 40, 41, 0x200000)
    srd(A, SWQ, 42, 43, 0x180000)
    srd(A, SWO, 44, 45, 0x80000)
    srd(A, SW1, 48, 49, 512 * 2752)
    srd(A, SW2, 50, 51, 1376 * 1024)
    srd(A, SOUT, 52, 53, 0x200000)
    srd(A, SDBG, 54, 55, 256)
    srd(A, SWS, 56, 57, WS_SZ)
    RH = [V(4, 4) for _ in range(2)]
    vTo, vDum, vTo2 = RH[0], RH[0] + 1, RH[0] + 2
    vZ4 = RH[1]
    vScan = RH[0] + 3
    A("s_lshr_b32 s6, s2, 3")
    A("s_mov_b32 s7, 0")
    A("s_cmp_ge_u32 s3, 4")
    A("s_cbranch_scc1 L_PROD")
    mark0 = V.n

    def get_slot():
        A("s_lshr_b32 s40, s6, 3")
        A("s_lshl_b32 s41, s5, 2")
        A("s_add_u32 s40, s40, s41")
        A("s_and_b32 s41, s6, 7")
        A("s_lshr_b32 s42, s40, 1")
        A("s_and_b32 s43, s6, 15")
    RT_, CT_, RRT_, C15_ = 40, 41, 42, 43

    def flag_base(dst, stage):
        A(f"s_mul_i32 s{dst}, s5, 1536")
        A(f"s_add_u32 s{dst}, s{dst}, {FLAG_OFF + stage*512}")

    def clear_flags():
        flag_base(58, 0)
        A("s_lshl_b32 s59, s6, 4")
        A("s_add_u32 s59, s59, s58")
        for i in range(4):
            A(f"v_mov_b32 v{vZ4+i}, 0")
        A(f"v_lshlrev_b32 v{t[1]}, 9, v{vL}")
        A("s_mov_b64 exec, 7")
        A(f"buffer_store_dwordx4 {vr(vZ4,4)}, v{t[1]}, {sr(SWS)}, s59 offen")
        A("s_mov_b64 exec, -1")

    def put_byte(code):
        A(f"s_or_b32 s58, s5, {code}")
        A(f"v_mov_b32 v{t[0]}, s58")
        A(f"v_mov_b32 v{t[1]}, 0")
        A("s_mov_b64 exec, 1")
        A(f"buffer_store_byte v{t[0]}, v{t[1]}, {sr(SDBG)}, s2 offen")
        A("s_mov_b64 exec, -1")

    def scan_load():
        return [f"v_lshlrev_b32 v{t[1]}, 2, v{vL}", f"buffer_load_dword v{vScan}, v{t[1]}, {sr(SDBG)}, 0 offen sc1"]

    def scan_eval(andm, code, masks=None):
        x = [f"s_or_b32 s58, s5, {code}", "s_mov_b32 s59, 0", f"v_and_b32 v{t[0]}, {hex(andm)}, v{vScan}", f"v_mov_b32 v{t[2]}, 0"]
        for b in range(4):
            x += [f"v_bfe_u32 v{t[1]}, v{t[0]}, {8*b}, 8", f"v_cmp_eq_u32 vcc, s58, v{t[1]}",
                  "s_bcnt1_i32_b64 s96, vcc", f"v_addc_co_u32 v{t[2]}, vcc, 0, v{t[2]}, vcc", "s_add_u32 s59, s59, s96"]
        return x

    T = Tc
    A("s_cmp_lg_u32 s3, 0")
    A("s_cbranch_scc1 L_CONS")
    clear_flags()
    for x in scan_load():
        A(x)
    A(f"v_lshlrev_b32 v{t[1]}, 7, v{vL}")
    A("s_mov_b64 exec, 0xfff")
    A(f"buffer_load_dword v{vDum}, v{t[1]}, {sr(SWS)}, s58 offen sc1")
    A("s_mov_b64 exec, -1")
    A("L_CONS:")
    get_slot()
    vOnes = V(4, 4)
    for i in range(4):
        A(f"v_mov_b32 v{vOnes+i}, {ONES}")
    assert BL[("HA", 0)].addr == 0
    A(f"ds_write_b128 v{vL16}, {vr(vOnes,4)}")
    RX = [V(2, 2) for _ in range(4)]
    vNon = V()
    markS = V.n
    A("s_lshl_b32 s58, s4, 11")
    x0, x1, xs0, xs1, w0 = V(), V(), V(), V(), V()
    A(f"v_lshrrev_b32 v{t[0]}, 1, v{vM}")
    A(f"v_xor_b32 v{t[0]}, v{vG}, v{t[0]}")
    A(f"v_lshlrev_b32 v{t[0]}, 4, v{t[0]}")
    A(f"v_lshl_add_u32 v{x0}, v{vM}, 7, v{t[0]}")
    A(f"v_xor_b32 v{x1}, 64, v{x0}")
    A(f"v_add_u32 v{xs0}, s58, v{x0}")
    A(f"v_add_u32 v{xs1}, s58, v{x1}")
    A(f"v_bfe_u32 v{t[0]}, v{vL}, 2, 2")
    A(f"v_and_b32 v{t[1]}, 3, v{vL}")
    A(f"v_lshrrev_b32 v{t[2]}, 1, v{t[0]}")
    A(f"v_and_b32 v{t[3]}, 1, v{vG}")
    A(f"v_lshl_add_u32 v{t[2]}, v{t[3]}, 1, v{t[2]}")
    A(f"v_xor_b32 v{t[2]}, s4, v{t[2]}")
    A(f"v_lshlrev_b32 v{t[2]}, 5, v{t[2]}")
    A(f"v_lshl_add_u32 v{t[2]}, v{t[1]}, 3, v{t[2]}")
    A(f"v_lshl_add_u32 v{t[0]}, v{vG}, 3, v{t[0]}")
    A(f"v_lshl_add_u32 v{w0}, v{t[0]}, 7, v{t[2]}")
    pXr = [Pat(A, V, x0), Pat(A, V, x1)]
    pXs = [Pat(A, V, xs0), Pat(A, V, xs1)]
    pW = Pat(A, V, w0)
    vHr = [V() for _ in range(4)]
    A(f"v_xor_b32 v{t[0]}, v{vG}, v{vM}")
    A(f"v_lshlrev_b32 v{t[0]}, 4, v{t[0]}")
    A(f"v_lshl_add_u32 v{vHr[0]}, v{vM}, 10, v{t[0]}")
    for i in range(1, 4):
        A(f"v_xor_b32 v{vHr[i]}, {64*i}, v{vHr[0]}")
    Dq = [V(4, 4) for _ in range(5)]
    Dk = [V(4, 4) for _ in range(5)]
    Dv = [V(4, 4) for _ in range(5)]
    Ssum, Ssq, Hsum, Hsq = [V(4, 4) for _ in range(4)]
    for b in Dq + Dk + Dv + [Ssum, Ssq, Hsum, Hsq]:
        for i in range(4):
            A(f"v_mov_b32 v{b+i}, 0")
    vD = V()
    mark = V.n
    buf = [dict(X=[V(4, 4) for _ in range(5)], XS=V(4, 4), W=[V(4, 4) for _ in range(3)]) for _ in range(2)]
    A(f"v_lshlrev_b32 v{t[0]}, 2, v{vG}")
    A(f"v_sub_u32 v{vD}, v{t[0]}, v{vM}")
    MS, MP9, MPE, MPO = 60, 68, 76, 84
    M1, M2, M3, MD = 44, 46, 48, 50
    for r_ in range(4):
        A(f"v_add_u32 v{t[1]}, {r_+7}, v{vD}")
        A(f"v_cmp_gt_u32 s[{MS+2*r_}:{MS+2*r_+1}], 8, v{t[1]}")
        A(f"v_cmp_le_i32 s[{MP9+2*r_}:{MP9+2*r_+1}], {9-r_}, v{vD}")
        A(f"v_cmp_le_i32 s[{MPE+2*r_}:{MPE+2*r_+1}], {1-r_}, v{vD}")
    A(f"v_cmp_gt_u32 s[92:93], 2, v{vG}")
    A(f"v_and_b32 v{t[0]}, 3, v{vM}")
    A(f"v_cmp_eq_u32 s[{M1}:{M1+1}], 1, v{t[0]}")
    A(f"v_cmp_eq_u32 s[{M2}:{M2+1}], 2, v{t[0]}")
    A(f"v_cmp_eq_u32 s[{M3}:{M3+1}], 3, v{t[0]}")
    A(f"v_lshrrev_b32 v{t[0]}, 2, v{vM}")
    A(f"v_cmp_eq_u32 s[{MD}:{MD+1}], v{vG}, v{t[0]}")
    T("slot")
    A("s_or_b32 s58, s3, s7")
    A("s_cmp_lg_u32 s58, 0")
    A("s_cbranch_scc1 L_NOBYTE")
    A("s_waitcnt vmcnt(0)")
    put_byte(0x10)
    A("L_NOBYTE:")
    A("s_waitcnt lgkmcnt(0)")
    A(f"s_cmp_eq_u32 s{RT_}, 0")
    A("s_cselect_b32 s94, 0, -1")
    A("s_mov_b32 s95, s94")
    A("s_and_b64 s[92:93], s[92:93], s[94:95]")
    for r_ in range(4):
        A(f"s_and_b64 s[{MPE+2*r_}:{MPE+2*r_+1}], s[{MPE+2*r_}:{MPE+2*r_+1}], s[92:93]")
        A(f"s_and_b64 s[{MPO+2*r_}:{MPO+2*r_+1}], s[{MP9+2*r_}:{MP9+2*r_+1}], s[94:95]")

    def a_reads(n):
        c, pp = n >> 1, n & 1
        base = BL[("AC", c)].addr

        def f(bi):
            B = buf[bi]
            r = []
            for sg in range(3):
                for hh in range(2):
                    r.append(f"ds_read_b64_tr_b16 {vr(B['W'][sg]+2*hh,2)}, {pW(base + 8192 + sg*8192 + pp*4096 + hh*512)}")
            r.append(f"ds_read_b128 {vr(B['X'][0],4)}, v{vHr[n&3]} offset:{(n>>2)*256}")
            for q in range(4):
                r.append(f"ds_read_b128 {vr(B['X'][1+q],4)}, {pXr[pp](base + q*2048)}")
            r.append(f"ds_read_b128 {vr(B['XS'],4)}, {pXs[pp](base)}")
            return r
        return f

    def rx_loads():
        L = []
        A_ = L.append
        A_(f"v_lshlrev_b32 v{t[0]}, 3, v{vG}")
        A_(f"v_lshl_add_u32 v{t[1]}, v{vM}, 11, v{t[0]}")
        A_(f"s_lshl_b32 s52, s{RT_}, 16")
        A_("s_lshr_b32 s53, s4, 1")
        A_("s_lshl_b32 s53, s53, 15")
        A_("s_add_u32 s52, s52, s53")
        A_(f"s_lshl_b32 s53, s{CT_}, 7")
        A_("s_add_u32 s52, s52, s53")
        A_("s_and_b32 s53, s4, 1")
        A_("s_lshl_b32 s53, s53, 6")
        A_("s_add_u32 s52, s52, s53")
        for e in range(2):
            for jo in range(2):
                A_(f"buffer_load_dwordx2 {vr(RX[2*e+jo],2)}, v{t[1]}, {sr(SX)}, s52 offen offset:{e*1024+jo*32}")
        A_(f"v_mov_b32 v{vNon}, 1")
        return L

    def a_mf(n):
      def f(bi):
        m = a_mf0(bi)
        if n == RXU:
            m[2] = "\n".join(rx_loads()) + "\n" + m[2]
        if n == CHK - 2:
            x = ["s_or_b32 s58, s3, s7", "s_cmp_lg_u32 s58, 0", "s_cbranch_scc1 L_CHK0_DONE"] + scan_load() + ["L_CHK0_DONE:"]
            m[0] = "\n".join(x) + "\n" + m[0]
        if n == CHK:
            x = ["s_or_b32 s58, s3, s7", "s_cmp_lg_u32 s58, 0", "s_cbranch_scc1 L_CHK_DONE", "s_mov_b32 s97, 0", "L_CHK_LOOP:",
                 "s_waitcnt vmcnt(0)"] + scan_eval(0xf7f7f7f7, 0x10) + [
                 f"v_add_u32_dpp v{t[2]}, v{t[2]}, v{t[2]} quad_perm:[1,0,3,2] row_mask:0xf bank_mask:0xf",
                 f"v_cmp_ne_u32 vcc, 1, v{t[2]}",
                 "s_cmp_lg_u64 vcc, 0", "s_cselect_b32 s58, 1, 0",
                 "s_cmp_eq_u32 s59, 32", "s_cbranch_scc1 L_CHK_GOT",
                 "s_add_u32 s97, s97, 1", f"s_cmp_gt_u32 s97, {SPIN}", "s_cbranch_scc1 L_CHK_GOT"] + scan_load() + [
                 "s_branch L_CHK_LOOP", "L_CHK_GOT:",
                 f"v_mov_b32 v{t[0]}, s58", f"v_mov_b32 v{t[1]}, {BCAST}", f"ds_write_b32 v{t[1]}, v{t[0]}",
                 "L_CHK_DONE:"]
            m[0] = "\n".join(x) + "\n" + m[0]
        return m
      return f

    def a_mf0(bi):
        B = buf[bi]
        m = []
        for f in range(5):
            m.append(mfma(Dq[f], B['W'][0], B['X'][f]))
            m.append(mfma(Dk[f], B['W'][1], B['X'][f]))
            m.append(mfma(Dv[f], B['X'][f], B['W'][2]))
        m.append(mfma(Hsum, vOnes, B['X'][0]))
        m.append(mfma(Hsq, B['X'][0], B['X'][0]))
        m.append(mfma(Ssum, vOnes, B['XS']))
        m.append(mfma(Ssq, B['XS'], B['XS']))
        return m

    for mf in run_units(A, [(n % 2 == 0, a_reads(n), a_mf(n)) for n in range(16)], T, "a"):
        for m in mf:
            A(m)
    T("a_mf_done")
    V.n = mark
    tt = [V() for _ in range(8)]
    vMean = V(2, 2)
    vHm = V(2, 2)
    vSt = V()
    for (sm, sq, dst) in ((Ssum, Ssq, vMean), (Hsum, Hsq, vHm)):
        A(f"v_cndmask_b32 v{tt[0]}, v{sq}, v{sq+1}, s[{M1}:{M1+1}]")
        A(f"v_cndmask_b32 v{tt[0]}, v{tt[0]}, v{sq+2}, s[{M2}:{M2+1}]")
        A(f"v_cndmask_b32 v{tt[0]}, v{tt[0]}, v{sq+3}, s[{M3}:{M3+1}]")
        ln_stats(A, sm, tt[0], dst, dst + 1, tt[1], tt[2])
    A(f"v_lshlrev_b32 v{vSt}, 3, v{vM}")
    A(f"v_add_u32 v{vSt}, {STATS}, v{vSt}")
    A("s_lshl_b32 s53, s4, 7")
    A(f"v_add_u32 v{tt[0]}, s53, v{vSt}")
    A(f"s_mov_b64 exec, s[{MD}:{MD+1}]")
    A(f"ds_write_b64 v{tt[0]}, {vr(vMean,2)} offset:128")
    A(f"ds_write_b64 v{vSt}, {vr(vHm,2)}")
    A("s_mov_b64 exec, -1")
    A("s_waitcnt lgkmcnt(0)")
    A("s_barrier")
    T("ae")
    SR = [V(2, 2) for _ in range(5)]
    SV = [V(8, 4) for _ in range(5)]
    vSg = V()
    A(f"v_lshlrev_b32 v{vSg}, 5, v{vG}")
    A(f"v_add_u32 v{vSg}, {STATS}, v{vSg}")
    A(f"v_mov_b32 v{tt[7]}, {BCAST}")
    A(f"ds_read_b32 v{tt[7]}, v{tt[7]}")
    for f in range(5):
        A(f"ds_read_b64 {vr(SR[f],2)}, v{vSt} offset:{128*f}")
    for f in range(5):
        A(f"ds_read_b128 {vr(SV[f],4)}, v{vSg} offset:{128*f}")
        A(f"ds_read_b128 {vr(SV[f]+4,4)}, v{vSg} offset:{128*f+16}")
    cq, ck = V(4, 4), V(4, 4)
    cv = V()
    A(f"v_lshlrev_b32 v{tt[0]}, 2, v{vM}")
    A(f"ds_bpermute_b32 v{cv}, v{tt[0]}, v{Dv[0]}")
    for i in range(4):
        A(f"v_mov_b32_dpp v{cq+i}, v{Dq[0]+i} row_newbcast:0 row_mask:0xf bank_mask:0xf")
        A(f"v_mov_b32_dpp v{ck+i}, v{Dk[0]+i} row_newbcast:0 row_mask:0xf bank_mask:0xf")
    A("s_waitcnt lgkmcnt(0)")
    A(f"v_readfirstlane_b32 s58, v{tt[7]}")
    A("s_cmp_lg_u32 s58, 0")
    A("s_cbranch_scc1 L_FIX")
    Qp = [None] + [V(2, 2) for _ in range(4)]
    Kp = [V(2, 2) for _ in range(5)]
    VtA, VtB = V(6, 2), V(6, 2)
    Vt = {0: VtA, 1: VtA + 2, 3: VtA + 4, 2: VtB + 2, 4: VtB + 4}

    def ln_rowlane(D, cs, sr_, dst):
        for i in range(4):
            A(f"v_fma_f32 v{D+i}, -v{sr_}, v{cs+i}, v{D+i}")
        for i in range(4):
            A(f"v_mul_f32 v{D+i}, v{sr_+1}, v{D+i}")
        A(f"v_cvt_pk_bf16_f32 v{dst}, v{D}, v{D+1}")
        A(f"v_cvt_pk_bf16_f32 v{dst+1}, v{D+2}, v{D+3}")

    for f in range(5):
        ln_rowlane(Dk[f], ck, SR[f], Kp[f])
    for f in range(1, 5):
        ln_rowlane(Dq[f], cq, SR[f], Qp[f])
    prev = {1: 0, 2: 0, 3: 1, 4: 2}
    Sp = {f: Dq[f] for f in range(1, 5)}
    Ss = {f: Dk[f] for f in range(1, 5)}
    for f in range(1, 5):
        A(f"v_mfma_f32_16x16x16_bf16 {vr(Sp[f],4)}, {vr(Kp[prev[f]],2)}, {vr(Qp[f],2)}, 0")
        A(f"v_mfma_f32_16x16x16_bf16 {vr(Ss[f],4)}, {vr(Kp[f],2)}, {vr(Qp[f],2)}, 0")
    for f in range(5):
        D = Dv[f]
        for i in range(4):
            A(f"v_fma_f32 v{D+i}, -v{SV[f]+2*i}, v{cv}, v{D+i}")
        for i in range(4):
            A(f"v_mul_f32 v{D+i}, v{SV[f]+2*i+1}, v{D+i}")
        A(f"v_cvt_pk_bf16_f32 v{Vt[f]}, v{D}, v{D+1}")
        A(f"v_cvt_pk_bf16_f32 v{Vt[f]+1}, v{D+2}, v{D+3}")
    A(f"v_mov_b32 v{VtB}, v{VtA}")
    A(f"v_mov_b32 v{VtB+1}, v{VtA+1}")
    NEG = V()
    A(f"v_mov_b32 v{NEG}, 0xff800000")
    pm = {1: MPE, 2: MPO, 3: MP9, 4: MP9}
    F = range(1, 5)
    S8 = {f: [Sp[f] + i for i in range(4)] + [Ss[f] + i for i in range(4)] for f in F}
    pk = {f: Dv[f] for f in F}
    mx = {f: V() for f in F}
    m2 = {f: V() for f in F}
    for f in F:
        for i in range(4):
            A(f"v_cvt_pk_bf16_f32 v{pk[f]+i}, v{S8[f][2*i]}, v{S8[f][2*i+1]}")
    for f in F:
        for i in range(4):
            A(f"v_lshlrev_b32 v{S8[f][2*i]}, 16, v{pk[f]+i}")
            A(f"v_and_b32 v{S8[f][2*i+1]}, 0xffff0000, v{pk[f]+i}")
    for f in F:
        for i in range(4):
            A(f"v_cndmask_b32 v{S8[f][i]}, v{NEG}, v{S8[f][i]}, s[{pm[f]+2*i}:{pm[f]+2*i+1}]")
            A(f"v_cndmask_b32 v{S8[f][4+i]}, v{NEG}, v{S8[f][4+i]}, s[{MS+2*i}:{MS+2*i+1}]")
    for f in F:
        s = S8[f]
        A(f"v_max3_f32 v{mx[f]}, v{s[0]}, v{s[1]}, v{s[2]}")
        A(f"v_max3_f32 v{m2[f]}, v{s[3]}, v{s[4]}, v{s[5]}")
        A(f"v_max3_f32 v{mx[f]}, v{mx[f]}, v{s[6]}, v{s[7]}")
        A(f"v_max_f32 v{mx[f]}, v{mx[f]}, v{m2[f]}")

    def xreduce(op):
        for sw in ("v_permlane16_swap_b32", "v_permlane32_swap_b32"):
            for f in F:
                A(f"v_mov_b32 v{m2[f]}, v{mx[f]}")
            for f in F:
                A(f"{sw} v{mx[f]}, v{m2[f]}")
            for f in F:
                A(f"{op} v{mx[f]}, v{mx[f]}, v{m2[f]}")

    xreduce("v_max_f32")
    CL = "0x3eb8aa3b"
    for f in F:
        A(f"v_mul_f32 v{mx[f]}, {CL}, v{mx[f]}")
    A(f"v_mov_b32 v{tt[0]}, {CL}")
    for f in F:
        for i in range(8):
            A(f"v_fma_f32 v{S8[f][i]}, v{S8[f][i]}, v{tt[0]}, -v{mx[f]}")
    for f in F:
        for i in range(8):
            A(f"v_exp_f32 v{S8[f][i]}, v{S8[f][i]}")
    for f in F:
        s = S8[f]
        A(f"v_add_f32 v{mx[f]}, v{s[0]}, v{s[1]}")
        A(f"v_add_f32 v{m2[f]}, v{s[2]}, v{s[3]}")
        A(f"v_add_f32 v{mx[f]}, v{mx[f]}, v{s[4]}")
        A(f"v_add_f32 v{m2[f]}, v{m2[f]}, v{s[5]}")
        A(f"v_add_f32 v{mx[f]}, v{mx[f]}, v{s[6]}")
        A(f"v_add_f32 v{m2[f]}, v{m2[f]}, v{s[7]}")
        A(f"v_add_f32 v{mx[f]}, v{mx[f]}, v{m2[f]}")
    xreduce("v_add_f32")
    for f in F:
        A(f"v_rcp_f32 v{mx[f]}, v{mx[f]}")
    for f in F:
        for i in range(8):
            A(f"v_mul_f32 v{S8[f][i]}, v{S8[f][i]}, v{mx[f]}")
    for f in F:
        for i in range(4):
            A(f"v_cvt_pk_bf16_f32 v{pk[f]+i}, v{S8[f][2*i]}, v{S8[f][2*i+1]}")
    for f in F:
        a = Vt[f] - 2
        A(f"v_mfma_f32_16x16x32_bf16 {vr(Sp[f],4)}, {vr(a,4)}, {vr(pk[f],4)}, 0")
    A(f"s_lshl_b32 s53, s{RT_}, 16")
    A(f"s_lshl_b32 s54, s{CT_}, 11")
    A("s_add_u32 s53, s53, s54")
    A("s_lshr_b32 s54, s4, 1")
    A("s_lshl_b32 s54, s54, 10")
    A("s_add_u32 s53, s53, s54")
    A("s_and_b32 s54, s4, 1")
    A("s_lshl_b32 s54, s54, 3")
    A("s_add_u32 s53, s53, s54")
    if O_OFF:
        A(f"s_add_u32 s53, s53, {O_OFF}")
    for f in F:
        A(f"v_cvt_pk_bf16_f32 v{pk[f]}, v{Sp[f]}, v{Sp[f]+1}")
        A(f"v_cvt_pk_bf16_f32 v{pk[f]+1}, v{Sp[f]+2}, v{Sp[f]+3}")
        A(f"buffer_store_dwordx2 {vr(pk[f],2)}, v{vL16}, {sr(SWS)}, s53 offen")
        if f < 4:
            A("s_add_u32 s53, s53, 16384")
    T("a_st")

    def post_flag(stage):
        flag_base(54, stage)
        A("s_lshl_b32 s55, s6, 4")
        A("s_add_u32 s54, s54, s55")
        A("s_lshl_b32 s55, s4, 2")
        A("s_add_u32 s54, s54, s55")
        A(f"v_mov_b32 v{t[0]}, 0")
        A("s_waitcnt vmcnt(0)")
        A("s_mov_b64 exec, 1")
        A(f"buffer_store_dword v{vNon}, v{t[0]}, {sr(SWS)}, s54 offen")
        A("s_mov_b64 exec, -1")

    post_flag(0)
    T("a_flag")

    V.n = markS

    def gemm64_pats():
        b0, b1, xx = V(), V(), V()
        A(f"v_bfe_u32 v{t[0]}, v{vL}, 2, 2")
        A(f"v_lshl_add_u32 v{t[0]}, v{vG}, 2, v{t[0]}")
        A(f"v_bfe_u32 v{t[1]}, v{t[0]}, 1, 2")
        A("s_and_b32 s53, s4, 1")
        A("s_lshl_b32 s53, s53, 1")
        A(f"v_xor_b32 v{t[1]}, s53, v{t[1]}")
        A(f"v_and_b32 v{t[2]}, 3, v{vL}")
        A(f"v_lshlrev_b32 v{t[2]}, 3, v{t[2]}")
        A(f"v_lshl_add_u32 v{t[2]}, v{t[1]}, 5, v{t[2]}")
        A(f"v_lshl_add_u32 v{b0}, v{t[0]}, 7, v{t[2]}")
        A(f"v_xor_b32 v{b1}, 32, v{b0}")
        A("s_lshr_b32 s53, s4, 1")
        A("s_lshl_b32 s53, s53, 11")
        A(f"v_add_u32 v{xx}, s53, v{vL16}")
        return [Pat(A, V, b0), Pat(A, V, b1)], Pat(A, V, xx)

    pB, pX = gemm64_pats()
    markG = V.n

    def gemm64(kw, kx, nk, G, tn):
        V.n = markG
        D = [[V(4, 4) for _ in range(2)] for _ in range(2)]
        for e in range(2):
            for jo in range(2):
                for i in range(4):
                    A(f"v_mov_b32 v{D[e][jo]+i}, 0")
        bf = [[dict(W=[V(4, 4), V(4, 4)], X=[V(4, 4), V(4, 4)]) for _ in range(2)] for _ in range(2)]
        starts = set()
        acc = 0
        for g in G:
            starts.add(acc)
            acc += g
        units = []
        for p0 in range(0, nk, 2):
            ps = list(range(p0, min(p0 + 2, nk)))

            def rd(bi, ps=ps):
                r = []
                for i, p in enumerate(ps):
                    wa, xa = BL[(kw, p)].addr, BL[(kx, p)].addr
                    for jo in range(2):
                        for hh in range(2):
                            r.append(f"ds_read_b64_tr_b16 {vr(bf[bi][i]['W'][jo]+2*hh,2)}, {pB[jo](wa + hh*2048)}")
                    for e in range(2):
                        r.append(f"ds_read_b128 {vr(bf[bi][i]['X'][e],4)}, {pX(xa + e*1024)}")
                return r

            def mf(bi, ps=ps):
                m = []
                for i, p in enumerate(ps):
                    for e in range(2):
                        for jo in range(2):
                            m.append(mfma(D[e][jo], bf[bi][i]['W'][jo], bf[bi][i]['X'][e]))
                return m
            units.append((p0 in starts, rd, mf))
        return D, run_units(A, units, T, tn)

    D, gen = gemm64("BW", "BO", 16, BGRP, "b")
    for mf in gen:
        A("s_barrier")
        for m in mf:
            A(m)
    T("b_mf_done")
    A(f"s_lshl_b32 s53, s{RT_}, 16")
    A("s_lshr_b32 s54, s4, 1")
    A("s_lshl_b32 s54, s54, 15")
    A("s_add_u32 s53, s53, s54")
    A(f"s_lshl_b32 s54, s{CT_}, 11")
    A("s_add_u32 s53, s53, s54")
    A("s_and_b32 s54, s4, 1")
    A("s_lshl_b32 s54, s54, 10")
    A("s_add_u32 s53, s53, s54")
    A(f"s_add_u32 s53, s53, {H_OFF}")

    def resid(d, rx, o):
        A(f"v_cvt_pk_bf16_f32 v{t[0]}, v{d}, v{d+1}")
        A(f"v_cvt_pk_bf16_f32 v{t[1]}, v{d+2}, v{d+3}")
        A(f"v_lshlrev_b32 v{d}, 16, v{t[0]}")
        A(f"v_and_b32 v{d+1}, 0xffff0000, v{t[0]}")
        A(f"v_lshlrev_b32 v{d+2}, 16, v{t[1]}")
        A(f"v_and_b32 v{d+3}, 0xffff0000, v{t[1]}")
        A(f"v_lshlrev_b32 v{t[0]}, 16, v{rx}")
        A(f"v_and_b32 v{t[1]}, 0xffff0000, v{rx}")
        A(f"v_lshlrev_b32 v{t[2]}, 16, v{rx+1}")
        A(f"v_and_b32 v{t[3]}, 0xffff0000, v{rx+1}")
        for i in range(4):
            A(f"v_add_f32 v{d+i}, v{d+i}, v{t[i]}")
        A(f"v_cvt_pk_bf16_f32 v{o}, v{d}, v{d+1}")
        A(f"v_cvt_pk_bf16_f32 v{o+1}, v{d+2}, v{d+3}")

    for e in range(2):
        for jo in range(2):
            resid(D[e][jo], RX[2 * e + jo], RH[e] + 2 * jo)
        A(f"buffer_store_dwordx4 {vr(RH[e],4)}, v{vL16}, {sr(SWS)}, s53 offen")
        if e == 0:
            A("s_add_u32 s53, s53, 16384")
    T("b_st")
    post_flag(1)
    T("b_flag")

    V.n = markG
    c0, c1, ch = V(), V(), V()
    A(f"v_bfe_u32 v{t[0]}, v{vL}, 2, 2")
    A(f"v_lshl_add_u32 v{t[0]}, v{vG}, 2, v{t[0]}")
    A(f"v_mul_u32_u24 v{t[0]}, 192, v{t[0]}")
    A(f"v_and_b32 v{t[1]}, 3, v{vL}")
    A(f"v_lshl_add_u32 v{t[0]}, v{t[1]}, 3, v{t[0]}")
    A(f"v_and_b32 v{t[1]}, 1, v{vG}")
    A(f"v_lshlrev_b32 v{t[1]}, 5, v{t[1]}")
    A(f"v_add_u32 v{c0}, v{t[0]}, v{t[1]}")
    A(f"v_sub_u32 v{c1}, v{t[0]}, v{t[1]}")
    A(f"v_add_u32 v{c1}, 32, v{c1}")
    A("s_lshl_b32 s53, s4, 11")
    A(f"v_add_u32 v{ch}, s53, v{vL16}")
    pC = [Pat(A, V, c0), Pat(A, V, c1)]
    pH = Pat(A, V, ch)
    D = [[V(4, 4) for _ in range(6)] for _ in range(2)]
    SS = [V(4, 4) for _ in range(2)]
    SQ = [V(4, 4) for _ in range(2)]
    CSD = [V(4, 4) for _ in range(6)]
    for b in D[0] + D[1] + SS + SQ + CSD:
        for i in range(4):
            A(f"v_mov_b32 v{b+i}, 0")
    cb = [dict(W=[V(4, 4) for _ in range(6)], X=[V(4, 4), V(4, 4)]) for _ in range(2)]
    A(f"v_lshlrev_b32 v{t[0]}, 3, v{vL}")
    A(f"v_add_u32 v{t[0]}, {STATS}, v{t[0]}")
    A(f"ds_write_b64 v{t[0]}, {vr(D[0][0],2)}")
    M0_ = 60
    A(f"v_cmp_eq_u32 s[{M0_}:{M0_+1}], 0, v{vM}")
    A("s_waitcnt lgkmcnt(0)")

    def c_reads(p):
        wa = BL[("CW", p >> 1)].addr + (p & 1) * 6144
        ha = BL[("CH", p)].addr

        def f(bi):
            r = []
            for e in range(2):
                r.append(f"ds_read_b128 {vr(cb[bi]['X'][e],4)}, {pH(ha + e*1024)}")
            for j in range(6):
                for hh in range(2):
                    r.append(f"ds_read_b64_tr_b16 {vr(cb[bi]['W'][j]+2*hh,2)}, {pC[j&1](wa + hh*3072 + (j&~1)*32)}")
            return r
        return f

    def c_mf(p):
        def f(bi):
            B = cb[bi]
            m = []
            for e in range(2):
                m.append(mfma(SS[e], vOnes, B['X'][e]))
                m.append(mfma(SQ[e], B['X'][e], B['X'][e]))
            for j in range(6):
                for e in range(2):
                    m.append(mfma(D[e][j], B['W'][j], B['X'][e]))
            lab = f"L_C_cs{p}"
            x = [f"s_cmp_lg_u32 s4, {p&3}", f"s_cbranch_scc1 {lab}"]
            for j in range(6):
                x.append(mfma(CSD[j], B['W'][j], vOnes))
            x.append(f"{lab}:")
            m[-1] = m[-1] + "\n" + "\n".join(x)
            return m
        return f

    for mf in run_units(A, [(p % 2 == 0, c_reads(p), c_mf(p)) for p in range(16)], T, "c"):
        for m in mf:
            A(m)
    A("s_nop 7")
    T("c_mf_done")
    A(f"v_lshlrev_b32 v{t[0]}, 4, v{vG}")
    A(f"v_add_u32 v{t[0]}, {STATS}, v{t[0]}")
    A(f"s_mov_b64 exec, s[{M0_}:{M0_+1}]")
    for j in range(6):
        for i in range(4):
            A(f"ds_add_f32 v{t[0]}, v{CSD[j]+i} offset:{64*j+4*i}")
    A("s_mov_b64 exec, -1")
    MR = [V(2, 2) for _ in range(2)]
    z = V()
    for e in range(2):
        sq = SQ[e]
        A(f"v_cndmask_b32 v{t[1]}, v{sq}, v{sq+1}, s[{M1}:{M1+1}]")
        A(f"v_cndmask_b32 v{t[1]}, v{t[1]}, v{sq+2}, s[{M2}:{M2+1}]")
        A(f"v_cndmask_b32 v{t[1]}, v{t[1]}, v{sq+3}, s[{M3}:{M3+1}]")
        A(f"v_cndmask_b32 v{t[1]}, 0, v{t[1]}, s[{MD}:{MD+1}]")
        for sw in ("v_permlane16_swap_b32", "v_permlane32_swap_b32"):
            A(f"v_mov_b32 v{z}, v{t[1]}")
            A(f"{sw} v{t[1]}, v{z}")
            A(f"v_add_f32 v{t[1]}, v{t[1]}, v{z}")
        ln_stats(A, SS[e], t[1], MR[e], MR[e] + 1, t[2], t[3])
    A("s_waitcnt lgkmcnt(0)")
    A("s_barrier")
    T("ce")
    A(f"s_cmp_eq_u32 s{C15_}, 15")
    A("s_cbranch_scc1 L_C_SKIPC")
    for j in range(6):
        A(f"ds_read_b128 {vr(CSD[j],4)}, v{t[0]} offset:{64*j}")
    A(f"s_lshl_b32 s53, s{RRT_}, 3")
    A("s_lshl_b32 s54, s4, 1")
    A("s_add_u32 s53, s53, s54")
    A("s_mul_i32 s53, s53, 44032")
    A(f"s_mul_i32 s54, s{C15_}, 3072")
    A("s_add_u32 s53, s53, s54")
    A(f"s_add_u32 s58, s53, {HID_OFF}")
    A(f"s_add_u32 s59, s53, {HID_OFF+44032}")
    A("s_waitcnt lgkmcnt(0)")
    OUT = [V(4, 4) for _ in range(2)]
    for jj in range(3):
        for e in range(2):
            for jo in range(2):
                j = 2 * jj + jo
                d = D[e][j]
                for i in range(4):
                    A(f"v_fma_f32 v{d+i}, -v{MR[e]}, v{CSD[j]+i}, v{d+i}")
                for i in range(4):
                    A(f"v_mul_f32 v{d+i}, v{MR[e]+1}, v{d+i}")
                for i in range(4):
                    A(f"v_max_f32 v{d+i}, 0, v{d+i}")
                A(f"v_cvt_pk_bf16_f32 v{OUT[e]+2*jo}, v{d}, v{d+1}")
                A(f"v_cvt_pk_bf16_f32 v{OUT[e]+2*jo+1}, v{d+2}, v{d+3}")
            off = f" offset:{jj*1024}" if jj else ""
            A(f"buffer_store_dwordx4 {vr(OUT[e],4)}, v{vL16}, {sr(SWS)}, s{58+e} offen{off}")
        if jj == 0:
            A(f"s_cmp_eq_u32 s{C15_}, 14")
            A("s_cbranch_scc1 L_C_CST")
    A("L_C_CST:")
    T("c_st")
    post_flag(2)
    A("L_C_SKIPC:")
    T("c_flag")

    D, gen = gemm64("DW", "DH", 43, DGRP, "d")
    for mf in gen:
        for m in mf:
            A(m)
    T("d_mf_done")
    vOo = V()
    A(f"v_and_b32 v{t[0]}, 1, v{vG}")
    A(f"v_lshlrev_b32 v{t[0]}, 5, v{t[0]}")
    A(f"v_lshrrev_b32 v{t[1]}, 1, v{vG}")
    A(f"v_lshl_add_u32 v{t[0]}, v{t[1]}, 4, v{t[0]}")
    A(f"v_lshl_add_u32 v{vOo}, v{vM}, 11, v{t[0]}")
    OUT = [V(4, 4) for _ in range(2)]
    for e in range(2):
        for jo in range(2):
            resid(D[e][jo], RH[e] + 2 * jo, OUT[e] + 2 * jo)
        o = OUT[e]
        A(f"v_permlane16_swap_b32 v{o}, v{o+2}")
        A(f"v_permlane16_swap_b32 v{o+1}, v{o+3}")
        off = " offset:1024" if e else ""
        A(f"buffer_store_dwordx4 {vr(o,4)}, v{vOo}, {sr(SOUT)}, s52 offen{off}")
    T.dump(t[0])
    A("s_endpgm")
    vhi_c = V.hi

    A("L_PROD:")
    T = Tp
    V.n = mark0
    vXd0, vXd1, vWd0, vWd1 = [V() for _ in range(4)]
    A(f"v_lshrrev_b32 v{t[0]}, 3, v{vL}")
    A(f"v_and_b32 v{t[1]}, 7, v{vL}")
    A(f"v_lshrrev_b32 v{t[2]}, 1, v{t[0]}")
    A(f"v_xor_b32 v{t[2]}, v{t[1]}, v{t[2]}")
    A(f"v_lshlrev_b32 v{t[2]}, 4, v{t[2]}")
    A(f"v_lshl_add_u32 v{vXd0}, v{t[0]}, 11, v{t[2]}")
    A(f"v_xor_b32 v{vXd1}, 64, v{vXd0}")
    A(f"v_and_b32 v{t[2]}, 2, v{t[0]}")
    A(f"v_xor_b32 v{t[2]}, v{t[1]}, v{t[2]}")
    A(f"v_lshlrev_b32 v{t[2]}, 4, v{t[2]}")
    A(f"v_mul_u32_u24 v{t[3]}, 3072, v{t[0]}")
    A(f"v_add_u32 v{vWd0}, v{t[3]}, v{t[2]}")
    A(f"v_xor_b32 v{vWd1}, 64, v{vWd0}")
    vHd = [V() for _ in range(4)]
    A("s_lshl_b32 s58, s4, 6")
    for j in range(4):
        A(f"s_add_u32 s59, s58, {16*j}")
        A(f"v_xor_b32 v{vHd[j]}, s59, v{vL16}")
        if ROTA:
            A(f"v_lshl_add_u32 v{vHd[j]}, s5, 7, v{vHd[j]}")
            A(f"v_and_b32 v{vHd[j]}, 1023, v{vHd[j]}")
    vWg = V()
    A(f"v_and_b32 v{t[2]}, 6, v{t[0]}")
    A(f"v_xor_b32 v{t[1]}, v{t[1]}, v{t[2]}")
    A(f"v_lshlrev_b32 v{t[1]}, 4, v{t[1]}")
    A(f"v_lshl_add_u32 v{vWg}, v{t[0]}, 10, v{t[1]}")
    vWc = [V() for _ in range(3)]
    for k in range(3):
        A(f"v_add_u32 v{t[0]}, {64*k}, v{vL}")
        A(f"v_mul_u32_u24 v{t[1]}, 171, v{t[0]}")
        A(f"v_lshrrev_b32 v{t[1]}, 11, v{t[1]}")
        A(f"v_mul_u32_u24 v{t[2]}, 12, v{t[1]}")
        A(f"v_sub_u32 v{t[2]}, v{t[0]}, v{t[2]}")
        A(f"v_bfe_u32 v{t[3]}, v{t[1]}, 2, 1")
        A(f"v_lshlrev_b32 v{t[3]}, 1, v{t[3]}")
        A(f"v_xor_b32 v{t[2]}, v{t[2]}, v{t[3]}")
        A(f"v_lshlrev_b32 v{t[2]}, 4, v{t[2]}")
        A(f"v_mul_u32_u24 v{t[1]}, 2752, v{t[1]}")
        A(f"v_add_u32 v{vWc[k]}, v{t[1]}, v{t[2]}")
    vL4, vPo, vNo, vZ = V(), V(), V(), V()
    A(f"v_lshlrev_b32 v{vL4}, 2, v{vL}")
    A(f"v_mov_b32 v{vZ}, 0")
    W1K, W2K, W3K, W4K = 60, 61, 62, 63
    A(f"s_lshl_b32 s{W1K}, s4, 10")
    A(f"s_lshl_b32 s{W2K}, s4, 11")
    A(f"s_mul_i32 s{W3K}, s4, 3072")
    A(f"s_lshl_b32 s{W4K}, s4, 12")
    get_slot()
    if CPF:
        A("s_getpc_b64 s[78:79]")
        A("L_PC:")
        A(f"s_sub_u32 s78, s78, L_PC-{KNAME}")
        A("s_subb_u32 s79, s79, 0")
        A("s_lshl_b32 s58, s6, 2")
        A("s_add_u32 s58, s58, s4")
        A("s_lshl_b32 s58, s58, 9")
        for i in range(4):
            A(f"s_min_u32 s59, s58, L_CODE_END-{KNAME}-4")
            A(f"s_load_dword s{80+i}, s[78:79], s59")
            if i < 3:
                A("s_add_u32 s58, s58, 128")
    T("slot")
    vTp, vDp, vTq = V(), V(), V()
    A("s_lshl_b32 s58, s6, 13")
    A(f"v_lshlrev_b32 v{vTp}, 7, v{vL}")
    A(f"v_add_u32 v{vTp}, s58, v{vTp}")
    sXb0, sXb1, sWb, sHb, sBW, sBO, sCW, sCH, sDH, sT = 64, 65, 66, 67, 68, 69, 70, 71, 72, 73
    A(f"s_lshl_b32 s58, s{RT_}, 16")
    A("s_lshr_b32 s59, s4, 1")
    A("s_lshl_b32 s59, s59, 15")
    A(f"s_add_u32 s{sXb0}, s58, s59")
    A("s_and_b32 s59, s4, 1")
    A("s_lshl_b32 s59, s59, 10")
    A(f"s_add_u32 s{sXb0}, s{sXb0}, s59")
    A(f"s_add_u32 s{sXb1}, s{sXb0}, 16384")
    A(f"s_mul_i32 s{sWb}, s4, 49152")
    A(f"s_lshl_b32 s59, s{CT_}, 7")
    A(f"s_add_u32 s{sWb}, s{sWb}, s59")
    A(f"s_lshl_b32 s{sHb}, s4, 13")
    A(f"s_add_u32 s{sBW}, s{sHb}, s59")
    A(f"s_add_u32 s{sHb}, s{sHb}, s58")
    A("s_cmp_lt_u32 s4, 2")
    A("s_cselect_b32 s59, 16, 31")
    A("s_lshl_b32 s59, s59, 10")
    A(f"s_sub_u32 s{sHb}, s{sHb}, s59")
    A("s_lshl_b32 s59, s4, 14")
    A(f"s_add_u32 s{sBO}, s58, s59")
    if O_OFF:
        A(f"s_add_u32 s{sBO}, s{sBO}, {O_OFF}")
    A(f"s_mul_i32 s{sCW}, s4, 44032")
    A(f"s_mul_i32 s59, s{C15_}, 192")
    A(f"s_add_u32 s{sCW}, s{sCW}, s59")
    A(f"s_lshl_b32 s{sCH}, s{RRT_}, 17")
    A("s_lshl_b32 s59, s4, 15")
    A(f"s_add_u32 s{sCH}, s{sCH}, s59")
    A(f"s_add_u32 s{sCH}, s{sCH}, {H_OFF}")
    A(f"s_lshl_b32 s{sDH}, s{RT_}, 2")
    A(f"s_add_u32 s{sDH}, s{sDH}, s4")
    A(f"s_mul_i32 s{sDH}, s{sDH}, 44032")
    A(f"s_add_u32 s{sDH}, s{sDH}, {HID_OFF}")

    def ld(v, srd_, soff, m0base, m0imm, off=0):
        A(f"s_add_u32 m0, s{m0base}, {m0imm - off}")
        o = f" offset:{off}" if off else ""
        if srd_ == SWS:
            o += " sc1"
        A(f"buffer_load_dwordx4 v{v}, {sr(srd_)}, s{soff} offen{o} lds")

    def issue(b):
        k, i, a = b.kind, b.idx, b.addr
        if k == "HA":
            A("s_cmp_eq_u32 s4, 0")
            A(f"s_cselect_b32 s58, {DUMMY}, s{W4K}")
            for j in range(4):
                A(f"s_add_u32 s{sT}, s{sHb}, {2048*j}")
                if j == 0:
                    A("s_mov_b32 m0, s58")
                else:
                    A(f"s_add_u32 m0, s{W4K}, {1024*j}")
                A(f"buffer_load_dwordx4 v{vHd[j]}, {sr(SX)}, s{sT} offen lds")
        elif k == "AC" and ROTA:
            A(f"s_add_u32 s58, s5, {i}")
            A("s_and_b32 s58, s58, 7")
            A("s_lshl_b32 s59, s58, 7")
            A("s_mul_i32 s58, s58, 196608")
            for e in range(2):
                A(f"s_add_u32 s{sT}, s{sXb1 if e else sXb0}, s59")
                ld(vXd1 if e else vXd0, SX, sT, W2K, a + e * 1024)
            A(f"s_add_u32 s{sT}, s{sWb}, s58")
            for e in range(2):
                if e:
                    A(f"s_add_u32 s{sT}, s{sT}, 24576")
                for sg in range(3):
                    ld(vWd1 if e else vWd0, SWQ, sT, W2K, a + 8192 + sg * 8192 + e * 1024, sg * 1024)
        elif k == "AC":
            for e in range(2):
                ld(vXd1 if e else vXd0, SX, sXb1 if e else sXb0, W2K, a + e * 1024, i * 128)
            for e in range(2):
                A(f"s_add_u32 s{sT}, s{sWb}, {i*196608 + e*24576}")
                for sg in range(3):
                    ld(vWd1 if e else vWd0, SWQ, sT, W2K, a + 8192 + sg * 8192 + e * 1024, sg * 1024)
        elif k in ("BW", "DW"):
            A(f"s_add_u32 s{sT}, s{sBW}, {i*32768}")
            ld(vWg, SWO if k == "BW" else SW2, sT, W1K, a)
        elif k in ("BO", "DH"):
            A(f"s_add_u32 s{sT}, s{sBO if k == 'BO' else sDH}, {i*1024}")
            ld(vL16, SWS, sT, W1K, a)
        elif k == "CW":
            A(f"s_add_u32 s{sT}, s{sCW}, {i*64*2752}")
            for x in range(3):
                ld(vWc[x], SW1, sT, W3K, a + x * 1024)
        elif k == "CH":
            for e in range(2):
                A(f"s_add_u32 s{sT}, s{sCH}, {i*1024 + e*16384}")
                ld(vL16, SWS, sT, W2K, a + e * 1024)

    QU = {"O": (SWS, 262144, O_OFF), "H": (SWS, 262144, H_OFF), "X": (SX, 262144, 0), "-": (SW2, 0, 0x7f000000)}
    for i in range(4):
        QU[f"W1{i}"] = (SW1, 0, 352256 + i * 262144)
    for i in range(6):
        QU[f"W2{i}"] = (SW2, 0, i * 262144)
    for i in range(3):
        QU[f"HD{i}"] = (SWS, 704512, HID_OFF + i * 262144)
        QU[f"WQ{i}"] = (SWQ, 0, 786432 + i * 262144)
    for i in range(2):
        QU[f"WO{i}"] = (SWO, 0, i * 262144)
    tcnt = [0]

    def touch(qs):
        if qs[0] == "alt":
            alts = qs[1]
            tcnt[0] += 1
            n = tcnt[0]
            for a_, q in enumerate(alts):
                if a_ < len(alts) - 1:
                    A(f"s_and_b32 s58, s5, {len(alts)-1}")
                    A(f"s_cmp_lg_u32 s58, {a_}")
                    A(f"s_cbranch_scc1 L_TA{n}_{a_}")
                touch(q)
                if a_ < len(alts) - 1:
                    A(f"s_branch L_TA{n}_E")
                    A(f"L_TA{n}_{a_}:")
            A(f"L_TA{n}_E:")
            return
        qs = list(qs) + ["-"] * (4 - len(qs))
        tcnt[0] += 1
        n = tcnt[0]
        for w, q in enumerate(qs):
            srd_, mul, base = QU[q]
            if w < 3:
                A(f"s_cmp_lg_u32 s4, {w}")
                A(f"s_cbranch_scc1 L_T{n}_{w}")
            if q.startswith("WQ") and ROTA:
                A("s_add_u32 s58, s5, 4")
                A("s_and_b32 s58, s58, 7")
                A("s_mul_i32 s58, s58, 196608")
                A(f"s_add_u32 s58, s58, {base - 786432}")
                A(f"v_add_u32 v{vTq}, s58, v{vTp}")
                A(f"v_subrev_u32 v{vDp}, 0x180000, v{vTq}")
                A(f"v_min_u32 v{vTq}, v{vTq}, v{vDp}")
                A(f"buffer_load_dword v{vDp}, v{vTq}, {sr(srd_)}, 0 offen")
                if w < 3:
                    A(f"s_branch L_T{n}_E")
                    A(f"L_T{n}_{w}:")
                continue
            if mul:
                A(f"s_mul_i32 s58, s5, {mul}")
                A(f"s_add_u32 s58, s58, {base}")
            else:
                A(f"s_mov_b32 s58, {base}")
            A(f"buffer_load_dword v{vDp}, v{vTp}, {sr(srd_)}, s58 offen" + (" sc1" if srd_ == SWS else ""))
            if w < 3:
                A(f"s_branch L_T{n}_E")
                A(f"L_T{n}_{w}:")
        A(f"L_T{n}_E:")

    def poll(dep):
        stage = "ABC".index(dep)
        n = {"A": 32, "B": 64, "C": 60}[dep]
        if dep == "A":
            A(f"v_mov_b32 v{t[0]}, {BCAST}")
            A(f"ds_read_b32 v{t[0]}, v{t[0]}")
            A("s_waitcnt lgkmcnt(0)")
            A(f"v_readfirstlane_b32 s58, v{t[0]}")
            A("s_cmp_lg_u32 s58, 0")
            A("s_cbranch_scc1 L_FIX")
        flag_base(75, stage)
        A(f"s_and_b32 s59, s6, {24 if dep == 'A' else 16}")
        A("s_lshl_b32 s59, s59, 4")
        A("s_add_u32 s75, s75, s59")
        A("s_mov_b32 s58, 0")
        if n < 64:
            A(f"s_mov_b32 s76, -1\ns_mov_b32 s77, {hex((1 << (n-32)) - 1)}")
            A("s_mov_b64 exec, s[76:77]")
        A(f"L_P_POLL{dep}:")
        A(f"buffer_load_dword v{vPo}, v{vL4}, {sr(SWS)}, s75 offen sc1")
        A("s_waitcnt vmcnt(0)")
        A(f"v_cmp_ne_u32 vcc, 1, v{vPo}")
        A("s_add_u32 s58, s58, 1")
        A(f"s_cmp_gt_u32 s58, {SPIN}")
        A(f"s_cbranch_scc1 L_P_POLL{dep}_OK")
        A(f"s_cbranch_vccnz L_P_POLL{dep}")
        A(f"L_P_POLL{dep}_OK:")
        if n < 64:
            A("s_mov_b64 exec, -1")

    issued = []
    for slot, ops in zip(range(-1, len(steps)), prog):
        ops = list(ops)
        if PF:
            for (sl, pos, nm) in TOUCH:
                if slot >= 0 and steps[slot] == sl:
                    if pos == "end":
                        ops.append(("touch", nm))
                        continue
                    if pos == "start":
                        k = 0
                    elif pos == "prepoll":
                        k = [i for i, o in enumerate(ops) if o[0] == "poll"][0]
                        ops.insert(k, ("touch", nm))
                        continue
                    else:
                        k = max([i + 1 for i, o in enumerate(ops) if o[0] == "ld" and o[1].kind == pos] + [0])
                    while k < len(ops) and ops[k][0] == "touch":
                        k += 1
                    ops.insert(k, ("touch", nm))
        for op in ops:
            if op[0] == "ld":
                issue(op[1])
                issued.append(op[1])
            elif op[0] == "touch":
                touch(op[1])
                issued.append(Blk("T", 0, 0, 10 ** 6))
            else:
                T("poll" + op[1])
                poll(op[1])
                T("polled" + op[1])
                issued = []
        nxt = slot + 1
        if slot == -1:
            T("iss")
        if nxt < len(steps):
            cnt = 0
            for b in reversed(issued):
                if b.need <= nxt:
                    break
                cnt += b.nl
            else:
                cnt = None
            if cnt is not None:
                assert cnt < 64
                A(f"s_waitcnt vmcnt({cnt})")
                while issued and sum(x.nl for x in issued) > cnt:
                    issued.pop(0)
            if steps[nxt] in ("a0", "a1", "a2", "a3", "a4", "a5", "a6", "a7", "ae", "b0", "be", "c0", "c2", "c4", "c5", "c6", "c7", "ce", "d0", "d4", "d8"):
                T("pre_" + steps[nxt])
            A("s_barrier")
    T.dump(t[0])
    A("L_END:")
    A("s_endpgm")
    A("L_FIX:")
    A("s_waitcnt vmcnt(0) lgkmcnt(0)")
    A("s_barrier")
    A("s_cmp_lg_u32 s3, 0")
    A("s_cbranch_scc1 L_FIX_W")
    A("s_or_b32 s58, s5, 0x10")
    A("s_lshr_b32 s60, s2, 2")
    A("s_and_b32 s61, s2, 3")
    A("s_bfm_b64 s[62:63], s60, 0")
    A("s_mov_b32 s6, 0")
    A(f"v_and_b32 v{t[0]}, 0xf7f7f7f7, v{vScan}")
    for b in range(4):
        A(f"v_bfe_u32 v{t[1]}, v{t[0]}, {8*b}, 8")
        A(f"v_cmp_eq_u32 vcc, s58, v{t[1]}")
        A("s_and_b64 s[64:65], vcc, s[62:63]")
        A("s_bcnt1_i32_b64 s59, s[64:65]")
        A("s_add_u32 s6, s6, s59")
        A("s_lshr_b64 s[64:65], vcc, s60")
        A("s_and_b32 s64, s64, 1")
        A(f"s_cmp_gt_u32 s61, {b}")
        A("s_cselect_b32 s64, s64, 0")
        A("s_add_u32 s6, s6, s64")
    A("s_cmp_ge_u32 s6, 32")
    A("s_cbranch_scc1 L_FIX_GOT")
    clear_flags()
    A("s_waitcnt vmcnt(0)")
    put_byte(0x18)
    A("s_mov_b32 s97, 0")
    A("L_FIX_LOOP:")
    for x in scan_load() + ["s_waitcnt vmcnt(0)"] + scan_eval(0xffffffff, 0x18):
        A(x)
    A("s_add_u32 s97, s97, 1")
    A(f"s_cmp_gt_u32 s97, {SPIN}")
    A("s_cbranch_scc1 L_FIX_GOT")
    A("s_cmp_lg_u32 s59, 32")
    A("s_cbranch_scc1 L_FIX_LOOP")
    A("L_FIX_GOT:")
    A(f"v_mov_b32 v{t[0]}, 0")
    A(f"v_mov_b32 v{t[1]}, s6")
    A(f"v_mov_b32 v{t[2]}, {BCAST}")
    A(f"ds_write2_b32 v{t[2]}, v{t[0]}, v{t[1]} offset0:0 offset1:1")
    A("s_waitcnt lgkmcnt(0)")
    A("L_FIX_W:")
    A("s_barrier")
    A(f"v_mov_b32 v{t[0]}, {BCAST+4}")
    A(f"ds_read_b32 v{t[0]}, v{t[0]}")
    A("s_waitcnt lgkmcnt(0)")
    A(f"v_readfirstlane_b32 s6, v{t[0]}")
    A("s_mov_b32 s7, 1")
    A("s_cmp_ge_u32 s6, 32")
    A("s_cbranch_scc1 L_END")
    A("s_cmp_ge_u32 s3, 4")
    A("s_cbranch_scc1 L_PROD")
    A("s_branch L_CONS")
    A("L_CODE_END:")
    out = f"; @launch grid=(256,1,1) block=(512,1,1) lds={LDS_TOTAL}\n"
    out += '.amdgcn_target "amdgcn-amd-amdhsa--gfx950"\n.text\n' + kern_hdr(KNAME) + A.finish()
    out += '.section .rodata,"a"\n' + desc(KNAME, max(V.hi, vhi_c))
    return out, Tc.names, Tp.names


if __name__ == "__main__":
    name = sys.argv[1] if len(sys.argv) > 1 else "m1"
    for kv in sys.argv[2:]:
        k, v = kv.split("=")
        globals()[k] = eval(v)
    o, a, b = build(verbose=False)
    open(f"work/{name}.s", "w").write(o)
    o, a, b = build(instr=True)
    open(f"work/{name}t.s", "w").write(o)
    import json
    json.dump([a, b], open(f"work/{name}t.json", "w"))
```
